```python
import torch

def _softmax(x, axis=-1):
    return torch.softmax(x, dim=axis)
def _gelu(x):
    return torch.nn.functional.gelu(x, approximate="tanh")
def _silu(x):
    return torch.nn.functional.silu(x)
def _sigmoid(x):
    return torch.sigmoid(x)
def _layernorm(x, axis=-1, eps=1e-5):
    m = x.mean(dim=axis, keepdim=True)
    v = x.var(dim=axis, keepdim=True, unbiased=False)
    return (x - m) / torch.sqrt(v + eps)
def _scatter_add(tgt, idx, src, axis=0):
    return tgt.clone().index_add_(axis, idx, src)
def _segment_sum(src, seg, n):
    out = torch.zeros((n,) + src.shape[1:], dtype=src.dtype)
    return out.index_add_(0, seg, src)
def _pad(x, pw):
    flat = tuple(v for pair in reversed(pw) for v in pair)
    return torch.nn.functional.pad(x, flat)

kernel_name = 'parallel_sum__linear_attn_block__dense_activation_silu__prompt'

def setup_inputs():

    _w = (lambda a: (lambda t: t.to(torch.bfloat16) if t.is_floating_point() else t)(torch.as_tensor(a)))
    def _A_setup():
        B, S, D = 1, 2048, 640
        return {
            "x": _w((lambda *s: torch.randn(*s, dtype=torch.bfloat16) * 0.05)(B, S, D)),
            "wqkv": _w((lambda *s: torch.randn(*s, dtype=torch.bfloat16) * 0.1)(D, 3 * D)),
            "wo": _w((lambda *s: torch.randn(*s, dtype=torch.bfloat16) * 0.05)(D, D)),
        }
    _A_in = _A_setup()

    def _B_setup():
        B, S, D, F = 1, 2048, 640, 1728
        return {
            "x": _w((lambda *s: torch.randn(*s, dtype=torch.bfloat16) * 0.05)(B, S, D)),
            "w1": _w((lambda *s: torch.randn(*s, dtype=torch.bfloat16) * 0.8)(D, F) * (D ** -0.5)),
            "w2": _w((lambda *s: torch.randn(*s, dtype=torch.bfloat16) * 0.1)(F, D) * (F ** -0.5)),
        }
    _B_in = _B_setup()

    return {
        "A_x": _A_in["x"],
        "A_wqkv": _A_in["wqkv"],
        "A_wo": _A_in["wo"],
        "B_x": _B_in["x"],
        "B_w1": _B_in["w1"],
        "B_w2": _B_in["w2"],
    }

def reference(A_x, A_wqkv, A_wo, B_x, B_w1, B_w2):
    def _A_ref(x, wqkv, wo):
        B, S, D = x.shape
        H = 32; Dh = D // H
        qkv = (lambda x, *d: x.permute(*d))((x @ wqkv).reshape(B, S, 3, H, Dh), 2, 0, 3, 1, 4)
        q, k, v = qkv[0], qkv[1], qkv[2]
        phi = lambda t: torch.where(t > 0, t + 1, torch.exp(t)) + 1e-6
        pq, pk = phi(q), phi(k)
        kv = torch.einsum("bhsd,bhse->bhde", pk, v)
        z = torch.einsum("bhsd->bhd", pk)
        num = torch.einsum("bhqd,bhde->bhqe", pq, kv)
        den = torch.einsum("bhqd,bhd->bhq", pq, z)[..., None] + 1e-6
        o = num / den
        return (lambda x, *d: x.permute(*d))(o, 0, 2, 1, 3).reshape(B, S, D) @ wo

    def _B_ref(x, w1, w2):
        h = torch.einsum("bsd,df->bsf", x, w1)
        h = _silu(h)
        out = torch.einsum("bsf,fd->bsd", h, w2)
        return out

    x = A_x
    xn = _layernorm(x, axis=-1)
    return x + _A_ref(xn, A_wqkv, A_wo) + _B_ref(xn, B_w1, B_w2)
```

```python
import re

TRANS = ("v_exp_f32", "v_log_f32", "v_rcp_f32", "v_rsq_f32", "v_sqrt_f32")


class I:
    __slots__ = ("t", "tag", "cond", "wvm", "wlg", "nvm", "nlg", "pad", "kind", "rd", "wr", "mn", "srcc", "srcab")

    def __init__(self, text, tag=None, cond=False, wvm=None, wlg=None):
        self.t = text
        self.tag = tag
        self.cond = cond
        self.wvm = wvm
        self.wlg = wlg
        self.nvm = None
        self.nlg = None
        self.pad = 0
        self.parse()

    def parse(self):
        t = self.t.split(";")[0].strip()
        self.rd, self.wr, self.srcc, self.srcab = set(), set(), set(), set()
        if self.wvm is not None or self.wlg is not None:
            self.kind, self.mn = "wait", "s_waitcnt"
            return
        if not t:
            self.kind, self.mn = "none", ""
            return
        if t.endswith(":"):
            self.kind, self.mn = "label", ""
            return
        if t.startswith("."):
            self.kind, self.mn = "none", ""
            return
        parts = t.split(None, 1)
        mn = self.mn = parts[0]
        ops = []
        if len(parts) > 1:
            body = re.sub(r"(op_sel\w*|quad_perm|neg_lo|neg_hi):\[[^\]]*\]", "", parts[1])
            ops = [o.strip() for o in body.split(",")]
        R = [regs(o) for o in ops]
        allr = set().union(*R) if R else set()
        if mn.startswith("v_mfma"):
            self.kind = "mfma"
            self.wr = R[0]
            self.srcab = R[1] | R[2]
            self.srcc = R[3]
            self.rd = self.srcab | self.srcc
        elif mn.startswith("v_"):
            self.kind = "trans" if mn.startswith(TRANS) else "valu"
            self.wr = set(R[0])
            self.rd = set().union(*R[1:]) if len(R) > 1 else set()
            if mn.startswith(("v_fmac", "v_permlane")) or "_dpp" in mn:
                self.rd |= R[0]
            if mn.startswith("v_permlane"):
                self.wr |= R[1]
            if mn.startswith(("v_add_co", "v_addc_co", "v_sub_co")):
                self.wr |= R[1]
        elif mn.startswith(("buffer_", "global_")):
            self.kind = "vmem"
            isload = "_load" in mn
            lds = bool(re.search(r"\blds\b", t))
            ret = "atomic" in mn and bool(re.search(r"\bsc0\b", t))
            if isload and not lds:
                self.wr = R[0]
                self.rd = set().union(*R[1:])
            else:
                self.rd = allr
                if ret:
                    self.wr = R[0]
            if lds:
                self.rd = self.rd | {"m0"}
                self.kind = "dma"
        elif mn.startswith("ds_"):
            self.kind = "ds"
            if mn.startswith(("ds_read", "ds_bpermute", "ds_swizzle")):
                self.wr = R[0]
                self.rd = set().union(*R[1:])
            else:
                self.rd = allr
        elif mn.startswith("s_"):
            if mn in ("s_waitcnt", "s_nop", "s_barrier", "s_sleep", "s_setprio", "s_endpgm"):
                self.kind = "misc"
            elif mn.startswith(("s_branch", "s_cbranch")):
                self.kind = "branch"
            elif mn.startswith(("s_load", "s_memtime", "s_memrealtime")):
                self.kind = "smem"
                self.wr = R[0]
                self.rd = set().union(*R[1:]) if len(R) > 1 else set()
            elif mn.startswith("s_cmp"):
                self.kind = "salu"
                self.rd = allr
            else:
                self.kind = "salu"
                self.wr = R[0]
                self.rd = set().union(*R[1:]) if len(R) > 1 else set()
        else:
            raise ValueError("unknown instruction: " + t)

    def states(self):
        if self.kind in ("label", "none"):
            return 0
        if self.kind == "wait" and self.nvm is None and self.nlg is None:
            return 0
        if self.mn == "s_nop":
            return int(self.t.split()[1]) + 1
        return 1

    def isvec(self):
        return self.kind in ("valu", "trans", "vmem", "dma", "ds", "mfma")


def regs(o):
    o = o.strip()
    o = o.split()[0] if o else o
    o = o.lstrip("-").replace("abs(", "").replace(")", "").replace("|", "")
    m = re.fullmatch(r"([vas])\[(\d+):(\d+)\]", o)
    if m:
        return {f"{m.group(1)}{i}" for i in range(int(m.group(2)), int(m.group(3)) + 1)}
    m = re.fullmatch(r"([vas])(\d+)", o)
    if m:
        return {o}
    if o in ("vcc", "vcc_lo", "vcc_hi"):
        return {"vcc"}
    if o in ("exec", "exec_lo", "exec_hi"):
        return {"exec"}
    if o == "m0":
        return {"m0"}
    return set()


def v(a, n=1):
    return f"v{a}" if n == 1 else f"v[{a}:{a+n-1}]"


def a_(a, n=1):
    return f"a{a}" if n == 1 else f"a[{a}:{a+n-1}]"


def s(a, n=1):
    return f"s{a}" if n == 1 else f"s[{a}:{a+n-1}]"


class Seg(list):
    def e(self, text, tag=None, cond=False):
        for line in text.strip("\n").split("\n"):
            if line.strip():
                self.append(I(line.strip(), tag, cond))
        return self

    def wait(self, vm=None, lg=None):
        if isinstance(vm, str):
            vm = [vm]
        if isinstance(lg, str):
            lg = [lg]
        self.append(I("", wvm=vm, wlg=lg))
        return self


def W(vm=None, lg=None):
    if isinstance(vm, str):
        vm = [vm]
    if isinstance(lg, str):
        lg = [lg]
    return I("", wvm=vm, wlg=lg)


def resolve_waits(path):
    vm, lg = [], []
    vdone, ldone = 0, 0
    for ins in path:
        if ins.kind in ("vmem", "dma"):
            vm.append((ins.tag, ins.cond))
        elif ins.kind == "ds":
            lg.append((ins.tag, ins.cond))
        elif ins.kind == "misc" and ins.mn == "s_waitcnt" and not ins.cond:
            if "vmcnt(0)" in ins.t:
                vdone = len(vm)
            if "lgkmcnt(0)" in ins.t:
                ldone = len(lg)
        elif ins.kind == "wait":
            for tags, hist, which in ((ins.wvm, vm, "vm"), (ins.wlg, lg, "lg")):
                if not tags:
                    continue
                idx = max((k for k, (tg, _) in enumerate(hist) if tg in tags), default=None)
                done = vdone if which == "vm" else ldone
                if idx is None or idx < done:
                    continue
                n = sum(1 for (tg, c) in hist[idx + 1:] if not c)
                lim = 63 if which == "vm" else 15
                n = min(n, lim)
                if which == "vm":
                    ins.nvm = n if ins.nvm is None else min(ins.nvm, n)
                    vdone = max(vdone, idx + 1)
                else:
                    ins.nlg = n if ins.nlg is None else min(ins.nlg, n)
                    ldone = max(ldone, idx + 1)


def isv(r):
    return r[0] in "va" and r != "vcc"


def need_states(p, c):
    n = 0
    pv = p.kind in ("valu", "trans")
    cv = c.kind in ("valu", "trans")
    if pv:
        w = p.wr
        wv = {r for r in w if isv(r)}
        ws = w - wv
        if c.kind == "mfma" and wv & c.rd:
            n = max(n, 2)
        if cv and ("_dpp" in c.mn or c.mn.startswith("v_permlane")) and wv & c.rd:
            n = max(n, 2)
        if cv and c.mn.startswith(("v_readlane", "v_readfirstlane")) and wv & c.rd:
            n = max(n, 1)
        if p.kind == "trans" and c.kind == "valu" and wv & c.rd:
            n = max(n, 1)
        if cv and ws & c.rd:
            n = max(n, 2)
        if c.kind in ("vmem", "dma") and ws & c.rd:
            n = max(n, 5)
    if p.kind == "mfma":
        d = p.wr
        if c.kind == "mfma":
            if d & c.srcab:
                n = max(n, 8)
            if d & c.srcc and (d != c.srcc):
                n = max(n, 6)
            if d & c.wr and not (d & c.srcc):
                n = max(n, 8)
        elif cv:
            if d & (c.rd | c.wr):
                n = max(n, 8)
            if p.srcc & c.wr:
                n = max(n, 3)
        elif c.kind in ("vmem", "dma", "ds"):
            if d & (c.rd | c.wr):
                n = max(n, 8)
    if p.kind == "salu" and "m0" in p.wr and c.kind == "dma":
        n = max(n, 1)
    if p.kind == "vmem" and re.search(r"store_dwordx[34]", p.mn):
        data = regs(p.t.split(None, 1)[1].split(",")[0])
        if data & c.wr:
            n = max(n, 2 if cv else 1)
    return n


def pad_hazards(path):
    changed = False
    for k, c in enumerate(path):
        if c.kind in ("label", "none", "wait", "misc", "branch"):
            continue
        dist = c.pad
        j = k - 1
        while j >= 0 and dist < 8:
            p = path[j]
            req = need_states(p, c)
            if req > dist:
                c.pad += req - dist
                dist = req
                changed = True
            dist += p.states() + p.pad
            j -= 1
    return changed


def render(seg):
    out = []
    for ins in seg:
        if ins.pad:
            out.append(f"    s_nop {ins.pad - 1}")
        if ins.kind == "wait":
            p = []
            if ins.nvm is not None:
                p.append(f"vmcnt({ins.nvm})")
            if ins.nlg is not None:
                p.append(f"lgkmcnt({ins.nlg})")
            if p:
                out.append("    s_waitcnt " + " ".join(p))
        elif ins.kind == "label":
            out.append(ins.t)
        else:
            out.append("    " + ins.t)
    return "\n".join(out) + "\n"


def finalize(paths):
    for p in paths:
        resolve_waits([i for sg in p for i in sg])
    for p in paths:
        pad_hazards([i for sg in p for i in sg])


def cost(ins):
    if ins.kind == "trans":
        return 2
    if ins.kind in ("label", "none"):
        return 0
    return 1


class Gaps:
    def __init__(self, mfmas):
        self.m = mfmas
        self.g = [[] for _ in mfmas]

    def put(self, k, *ins):
        for x in ins:
            self.g[k].append(x if isinstance(x, I) else I(x))

    def load(self, k):
        vec = sum(cost(x) for x in self.g[k] if x.isvec())
        tot = sum(cost(x) for x in self.g[k])
        return vec, tot

    def fill(self, stream, k0, k1, maxper=2):
        k = k0
        used = 0
        for x in stream:
            while True:
                if k >= k1:
                    k = k1 - 1
                    break
                vec, tot = self.load(k)
                first_scalar = bool(self.g[k]) and not self.g[k][0].isvec()
                c = cost(x)
                if x.isvec():
                    cap = 3 if first_scalar else 2
                    ok = vec + c <= 2 and tot + c <= cap
                else:
                    cap = 3 if (first_scalar or not self.g[k]) else 2
                    ok = tot + c <= cap
                if ok and used < maxper:
                    break
                if k == k1 - 1:
                    break
                k += 1
                used = 0
            self.g[k].append(x)
            used += cost(x)
        return k

    def flat(self):
        sg = Seg()
        for m, g in zip(self.m, self.g):
            sg.append(m)
            sg.extend(g)
        return sg
```

```python
import sys, struct
from asmlib import *

NAME = "parallel_sum__linear_attn_block__dense_activation_silu__prompt_kernel"


def f2u(x):
    return struct.unpack("<I", struct.pack("<f", x))[0]


LOG2E = 1.4426950408889634
LN2 = 0.6931471805599453
HUGE = 0x40000000

WS_STATS = 0x0
WS_ZERO = 0x8000
WS_CROW = WS_ZERO
WS_CKV = WS_ZERO + 16 * 128
WS_CO = WS_ZERO + 32 * 128
WS_KV = WS_ZERO + 160 * 128
assert WS_KV + 8 * 7168 + 1024 <= WS_ZERO + 256 * 384
WS_B2 = 0x28000
WS_A2 = WS_B2 + 8 * 74 * 5120
WS_PQ = WS_A2 + 32 * 74 * 4096
WS_END = WS_PQ + 32 * 20 * 4096
WS_PROF = 0x1000000

L_W = 0
L_X = 81920
L_RP = 155648
L_B2 = 0
L_KV = 143360
LDS_BYTES = 163840

sX, sW, sWS, sST, sDBG, sOUT, sRP = 8, 12, 16, 20, 24, 28, 32
sWAVE, sI, sROLE, sTILE, sPITCH, sSEG0, sSEGD = 36, 37, 38, 39, 40, 41, 42
sXOFF, sWOFF, sWSTEP, sMX, sMW = 43, 44, 45, 46, 47
sI2, sJ2, sT0, sT1, sT2, sT3, sT4, sT5 = 48, 49, 50, 51, 52, 53, 54, 55
sSPIN, sB2, sSO, sROW0, sASTR, sABASE = 56, 57, 58, 59, 60, 61
sC0 = 62
sC1 = 64
sRPO = 66
sU = 70
sMSK = 72
sCTR = 74
sPROF = 76

vLANE, vT, vG, vL16, vL16B = 0, 1, 2, 3, 4
vTMP = 5
ACC = 8
WR = 128
XR = 148
vWD = 172
vXD = 177
vWRD = 183
vXRD = 187
vTOK = 189
SD = 192


def acc(rb, cb):
    return ACC + (cb * 3 + rb) * 4


def head(x):
    return x // 20


def mask_kv(db, eb):
    m = 0
    for l in range(64):
        if head(16 * db + 4 * (l >> 4)) == head(16 * eb + (l & 15)):
            m |= 1 << l
    return m


def mask_z(db):
    m = 0
    for l in range(64):
        if head(16 * db + 4 * (l >> 4)) == (l & 3):
            m |= 1 << l
    return m


KVBLK = [(db, eb) for eb in range(5) for db in range(5) if abs(db - eb) <= 1]


class Gen:
    def __init__(self, **o):
        self.o = dict(prof=False, spin=1 << 22)
        self.o.update(o)
        self.nstamp = 0
        self.stamps = []

    def stamp(self, sg, name):
        if not self.o["prof"]:
            return
        if name not in self.stamps:
            self.stamps.append(name)
        k = self.stamps.index(name)
        assert k < 13
        sg.e(f"s_memtime {s(sPROF + 2 * k, 2)}" if name != "rt0" else f"s_memrealtime {s(sPROF + 2 * k, 2)}")

    def srd(self, sg, dst, lo, hi, size):
        sg.e(f"""
        s_mov_b32 {s(dst)}, {lo}
        s_mov_b32 {s(dst+1)}, {hi}
        s_mov_b32 {s(dst+2)}, {size}
        s_mov_b32 {s(dst+3)}, 0x20000
        """)

    def spin(self, sg, lab, load, cmp):
        sg.e(f"s_cbranch_vccz {lab}_ok")
        sg.e(f"s_mov_b32 {s(sSPIN)}, 0")
        sg.e(f"{lab}_again:")
        sg.e(load, cond=True)
        sg.e("s_waitcnt vmcnt(0)", cond=True)
        sg.e(cmp)
        sg.e(f"""
        s_add_u32 {s(sSPIN)}, {s(sSPIN)}, 1
        s_cmp_gt_u32 {s(sSPIN)}, {self.o['spin']}
        s_cbranch_scc1 {lab}_ok
        s_cbranch_vccnz {lab}_again
        {lab}_ok:
        """)

    def prologue(self):
        sg = Seg()
        self.stamp(sg, "rt0")
        self.stamp(sg, "start")
        sg.e(f"""
        s_cmp_ge_u32 s2, 256
        s_cbranch_scc1 L_exit
        s_load_dwordx4 s[4:7], s[0:1], 0
        s_load_dwordx2 s[50:51], s[0:1], 16
        s_load_dwordx8 {s(80,8)}, s[0:1], 32
        s_load_dwordx2 s[52:53], s[0:1], 64
        """.replace("s[80:87]", "s[64:71]"))
        sg.e(f"""
        s_getpc_b64 s[54:55]
        L_pc:
        s_lshr_b32 s3, s2, 3
        s_mul_i32 s3, s3, CODE_LINES*128
        v_lshlrev_b32 v5, 7, v0
        v_add_u32 v5, s3, v5
        v_cmp_gt_u32 vcc, CODE_LINES, v0
        s_and_saveexec_b64 s[56:57], vcc
        s_cbranch_execz L_nopf
        """)
        sg.e("global_load_dword v255, v5, s[54:55]", cond=True)
        sg.e(f"""
        L_nopf:
        s_mov_b64 exec, s[56:57]
        v_lshrrev_b32 v1, 6, v0
        v_and_b32 v0, 63, v0
        v_readfirstlane_b32 {s(sWAVE)}, v1
        v_and_b32 {v(vT)}, 15, v0
        v_lshrrev_b32 {v(vG)}, 4, v0
        v_lshlrev_b32 {v(vL16)}, 4, v0
        v_add_u32 {v(vL16B)}, 4096, {v(vL16)}
        s_and_b32 s3, s2, 7
        s_lshr_b32 {s(sJ2)}, s2, 3
        s_lshl_b32 {s(sI2)}, s3, 2
        s_lshl_b32 s3, s3, 5
        s_add_u32 s3, s3, {s(sJ2)}
        s_lshr_b32 {s(sI)}, {s(sJ2)}, 3
        s_add_u32 {s(sI2)}, {s(sI2)}, {s(sI)}
        s_and_b32 {s(sJ2)}, {s(sJ2)}, 7
        s_mul_i32 {s(sTILE)}, s3, 993
        s_lshr_b32 {s(sTILE)}, {s(sTILE)}, 16
        s_mul_i32 {s(sI)}, {s(sTILE)}, 66
        s_sub_u32 s3, s3, {s(sI)}
        s_cmp_lt_u32 {s(sTILE)}, 3
        s_cselect_b32 {s(sI)}, 43, 52
        s_cselect_b32 {s(sROLE)}, 6, 5
        s_mul_i32 {s(sI)}, {s(sI)}, s3
        s_lshr_b32 {s(sI)}, {s(sI)}, 8
        s_mul_i32 {s(sROLE)}, {s(sROLE)}, {s(sI)}
        s_sub_u32 s3, s3, {s(sROLE)}
        s_cmp_eq_u32 {s(sI)}, 11
        s_cselect_b32 s3, 3, s3
        s_mul_i32 {s(sROW0)}, {s(sI)}, 188
        s_cmp_lt_u32 s3, 2
        s_cbranch_scc1 L_dec_kv
        s_cmp_eq_u32 s3, 2
        s_cbranch_scc1 L_dec_q
        s_mul_i32 {s(sTILE)}, {s(sTILE)}, 3
        s_add_u32 {s(sTILE)}, {s(sTILE)}, s3
        s_sub_u32 {s(sTILE)}, {s(sTILE)}, 3
        s_mov_b32 {s(sROLE)}, 2
        s_mul_i32 {s(sSEG0)}, {s(sTILE)}, 320
        s_mov_b32 {s(sSEGD)}, 0
        s_mov_b32 {s(sPITCH)}, 3456
        s_branch L_dec_done
        L_dec_q:
        s_mov_b32 {s(sROLE)}, 1
        s_mul_i32 {s(sSEG0)}, {s(sTILE)}, 320
        s_mov_b32 {s(sSEGD)}, 0
        s_mov_b32 {s(sPITCH)}, 3840
        s_branch L_dec_done
        L_dec_kv:
        s_lshl_b32 {s(sTILE)}, {s(sTILE)}, 1
        s_add_u32 {s(sTILE)}, {s(sTILE)}, s3
        s_mov_b32 {s(sROLE)}, 0
        s_mul_i32 {s(sSEG0)}, {s(sTILE)}, 160
        s_add_u32 {s(sSEG0)}, {s(sSEG0)}, 1280
        s_mov_b32 {s(sSEGD)}, 1120
        s_mov_b32 {s(sPITCH)}, 3840
        L_dec_done:
        s_lshl_b32 {s(sWSTEP)}, {s(sPITCH)}, 6
        s_mul_i32 {s(sMX)}, {s(sWAVE)}, 18432
        s_add_u32 {s(sMX)}, {s(sMX)}, {L_X}
        s_mul_i32 {s(sMW)}, {s(sWAVE)}, 5120
        """)
        sg.e(f"""
        s_mul_i32 s3, {s(sWAVE)}, 44
        s_add_u32 s3, s3, {s(sROW0)}
        v_lshrrev_b32 v5, 3, v0
        v_and_b32 v6, 7, v0
        v_lshrrev_b32 v7, 1, v5
        v_xor_b32 v6, v6, v7
        v_lshlrev_b32 v6, 4, v6
        v_add_u32 v7, s3, v5
        v_mul_u32_u24 v7, 1280, v7
        v_add_u32 {v(vXD)}, v7, v6
        v_xor_b32 {v(vXD+1)}, 64, {v(vXD)}
        v_add_u32 {v(vXD+1)}, {8*1280}, {v(vXD+1)}
        v_add_u32 {v(vXD+2)}, {16*1280}, {v(vXD)}
        v_add_u32 {v(vXD+3)}, {16*1280}, {v(vXD+1)}
        v_add_u32 {v(vXD+4)}, {32*1280}, {v(vXD)}
        v_add_u32 {v(vXD+5)}, {32*1280}, {v(vXD+1)}
        s_mul_i32 s3, {s(sWAVE)}, {41*1280}
        s_sub_u32 s3, {132*1280}, s3
        v_add_u32 v7, s3, {v(vXD+5)}
        v_cmp_lt_u32 vcc, 31, v0
        v_cndmask_b32 {v(vXD+5)}, {v(vXD+5)}, v7, vcc
        """)
        sg.e(f"s_lshl_b32 s3, {s(sWAVE)}, 4")
        for m in range(5):
            sg.e(f"""
            v_add_u32 v5, {64*m}, v0
            v_mul_u32_u24 v6, 3277, v5
            v_lshrrev_b32 v6, 16, v6
            v_mul_u32_u24 v7, 20, v6
            v_sub_u32 v5, v5, v7
            v_lshrrev_b32 v7, 2, v6
            v_and_b32 v7, 2, v7
            v_xor_b32 v5, v5, v7
            v_cmp_lt_u32 vcc, 9, v5
            v_mov_b32 v7, {s(sSEGD)}
            v_lshlrev_b32 v5, 4, v5
            v_cndmask_b32 v7, 0, v7, vcc
            v_add3_u32 v5, v5, v7, {s(sSEG0)}
            v_cmp_le_u32 vcc, {s(sPITCH)}, v5
            v_add_u32 v6, s3, v6
            v_mad_u32_u24 v5, v6, {s(sPITCH)}, v5
            v_or_b32 v6, {hex(HUGE)}, v5
            v_cndmask_b32 {v(vWD+m)}, v5, v6, vcc
            """)
        sg.e("s_waitcnt lgkmcnt(0)")
        self.srd(sg, sX, "s4", "s5", 2048 * 1280)
        sg.e(f"""
        s_cmp_eq_u32 {s(sROLE)}, 2
        s_cselect_b32 {s(sW)}, s64, s6
        s_cselect_b32 {s(sW+1)}, s65, s7
        s_mul_i32 {s(sW+2)}, {s(sPITCH)}, 640
        s_mov_b32 {s(sW+3)}, 0x20000
        s_mov_b32 {s(sXOFF)}, 0
        s_mov_b32 {s(sWOFF)}, 0
        """)
        return sg

    def dma_x(self, st, m):
        r = [I(f"s_add_u32 m0, {s(sMX)}, {(st % 3) * 6144 + m * 1024}")]
        ld = I(f"buffer_load_dwordx4 {v(vXD+m)}, {s(sX,4)}, {s(sXOFF)} offen lds", tag=f"S{st}")
        if m == 5:
            r.append([I("s_mov_b32 exec_hi, 0x00ffffff"), ld, I("s_mov_b32 exec_hi, -1")])
        else:
            r.append([ld])
        return r

    def dma_w(self, st, m):
        return [I(f"s_add_u32 m0, {s(sMW)}, {L_W + (st % 4) * 20480 + m * 1024}"),
                [I(f"buffer_load_dwordx4 {v(vWD+m)}, {s(sW,4)}, {s(sWOFF)} offen lds", tag=f"S{st}")]]

    def stage_dma(self, sg, st):
        for m in range(6):
            a, b = self.dma_x(st, m)
            sg.append(a); sg.extend(b)
            if m < 5:
                a, b = self.dma_w(st, m)
                sg.append(a); sg.extend(b)
        sg.e(f"s_add_u32 {s(sXOFF)}, {s(sXOFF)}, 128")
        sg.e(f"s_add_u32 {s(sWOFF)}, {s(sWOFF)}, {s(sWSTEP)}")

    def side_setup_loads(self):
        sg = Seg()
        self.srd(sg, sWS, "s52", "s53", WS_END if not self.o["prof"] else WS_PROF + 0x100000)
        self.srd(sg, sST, "s52", "s53", 2048 * 8)
        self.srd(sg, sOUT, "s68", "s69", 2048 * 1280)
        self.srd(sg, sDBG, "s70", "s71", 256)
        R = SD
        sg.e(f"""
        s_lshl_b32 s3, s2, 2
        s_add_u32 {s(sU)}, s3, {s(sWAVE)}
        s_lshl_b32 s3, {s(sU)}, 1
        v_lshrrev_b32 v5, 5, v0
        v_add_u32 v5, s3, v5
        v_lshlrev_b32 {v(R+10)}, 3, v5
        v_mul_u32_u24 v5, 1280, v5
        v_and_b32 v6, 31, v0
        v_lshl_add_u32 v7, v6, 4, v5
        v_lshl_add_u32 v6, v6, 3, v5
        """)
        sg.e(f"buffer_load_dwordx4 {v(R,4)}, v7, {s(sX,4)}, 0 offen", tag="st")
        sg.e(f"buffer_load_dwordx4 {v(R+4,4)}, v7, {s(sX,4)}, 0 offen offset:512", tag="st")
        sg.e(f"buffer_load_dwordx2 {v(R+8,2)}, v6, {s(sX,4)}, 0 offen offset:1024", tag="st")
        sg.e(f"""
        s_mul_i32 {s(sT4)}, {s(sU)}, 6554
        s_lshr_b32 {s(sT4)}, {s(sT4)}, 16
        s_mul_i32 s3, {s(sT4)}, 10
        s_sub_u32 {s(sT5)}, {s(sU)}, s3
        s_cmp_lt_u32 {s(sT4)}, 54
        s_cselect_b32 {s(sRP)}, s66, s50
        s_cselect_b32 {s(sRP+1)}, s67, s51
        s_cselect_b32 {s(sRP+2)}, 27, 10
        s_mul_i32 {s(sRP+2)}, {s(sRP+2)}, {64*1280}
        s_mov_b32 {s(sRP+3)}, 0x20000
        s_lshl_b32 {s(sT0)}, {s(sT4)}, 5
        s_add_u32 {s(sT1)}, {s(sT0)}, 16
        s_cmp_lt_u32 {s(sT4)}, 54
        s_cbranch_scc1 L_rp_ffn
        s_sub_u32 s3, {s(sT4)}, 54
        s_mul_i32 {s(sT2)}, s3, 52
        s_lshr_b32 {s(sT2)}, {s(sT2)}, 8
        s_mul_i32 {s(sT3)}, {s(sT2)}, 5
        s_sub_u32 s3, s3, {s(sT3)}
        s_mul_i32 {s(sT2)}, {s(sT2)}, 160
        s_lshr_b32 {s(sT0)}, s3, 1
        s_mul_i32 {s(sT0)}, {s(sT0)}, 80
        s_and_b32 {s(sT1)}, s3, 1
        s_lshl_b32 {s(sT1)}, {s(sT1)}, 5
        s_add_u32 {s(sT0)}, {s(sT0)}, {s(sT1)}
        s_add_u32 {s(sT1)}, {s(sT0)}, 16
        s_cmp_eq_u32 s3, 4
        s_cselect_b32 {s(sT0)}, 64, {s(sT0)}
        s_cselect_b32 {s(sT1)}, 144, {s(sT1)}
        s_add_u32 {s(sT0)}, {s(sT0)}, {s(sT2)}
        s_add_u32 {s(sT1)}, {s(sT1)}, {s(sT2)}
        L_rp_ffn:
        s_mul_i32 {s(sT0)}, {s(sT0)}, 1280
        s_mul_i32 {s(sT1)}, {s(sT1)}, 1280
        s_lshl_b32 s3, {s(sT5)}, 7
        s_cmp_lt_u32 {s(sU)}, 740
        s_cselect_b32 s3, s3, {hex(HUGE)}
        s_cselect_b32 {s(sT0)}, {s(sT0)}, 0
        s_cselect_b32 {s(sT1)}, {s(sT1)}, 0
        s_cselect_b32 {s(sT3)}, 0, {hex(HUGE)}
        v_lshrrev_b32 v5, 3, v0
        v_and_b32 v6, 7, v0
        v_mul_u32_u24 v5, 1280, v5
        v_lshl_add_u32 v5, v6, 4, v5
        v_add_u32 v5, s3, v5
        v_add_u32 v6, {8*1280}, v5
        v_or_b32 {v(R+11)}, {s(sT3)}, {v(vL16)}
        """)
        P = SD + 32
        sg.e(f"buffer_load_dwordx4 {v(P,4)}, v5, {s(sRP,4)}, {s(sT0)} offen", tag="rp")
        sg.e(f"buffer_load_dwordx4 {v(P+4,4)}, v6, {s(sRP,4)}, {s(sT0)} offen", tag="rp")
        sg.e(f"buffer_load_dwordx4 {v(P+8,4)}, v5, {s(sRP,4)}, {s(sT1)} offen", tag="rp")
        sg.e(f"buffer_load_dwordx4 {v(P+12,4)}, v6, {s(sRP,4)}, {s(sT1)} offen", tag="rp")
        sg.e(f"s_min_u32 {s(sT4)}, {s(sT4)}, 73")
        for c in range(4):
            sg.e(f"""
            s_lshl_b32 s3, {s(sT5)}, 2
            s_add_u32 s3, s3, {c}
            s_mul_i32 {s(sT0+2)}, s3, 52
            s_lshr_b32 {s(sT0+2)}, {s(sT0+2)}, 8
            s_mul_i32 {s(sT0+3)}, {s(sT0+2)}, {74*5-5}
            s_add_u32 s3, s3, {s(sT0+3)}
            s_mul_i32 {s(sT0+3)}, {s(sT4)}, 5
            s_add_u32 s3, s3, {s(sT0+3)}
            s_lshl_b32 s3, s3, 10
            s_add_u32 {s(sRPO+c)}, s3, {WS_B2}
            """)
        return sg

    def lds_read_setup(self):
        sg = Seg()
        sg.e(f"""
        v_lshrrev_b32 v5, 2, {v(vT)}
        v_lshl_add_u32 v5, {v(vG)}, 3, v5
        v_mul_u32_u24 v5, 320, v5
        v_and_b32 v6, 3, {v(vT)}
        v_lshl_add_u32 v5, v6, 3, v5
        v_and_b32 v6, 1, {v(vG)}
        v_lshlrev_b32 v6, 5, v6
        v_add_u32 {v(vWRD)}, v5, v6
        v_sub_u32 {v(vWRD+1)}, v5, v6
        v_add_u32 {v(vWRD+2)}, 40960, {v(vWRD)}
        v_add_u32 {v(vWRD+3)}, 40960, {v(vWRD+1)}
        v_lshrrev_b32 v5, 1, {v(vT)}
        v_xor_b32 v5, v5, {v(vG)}
        v_lshlrev_b32 v5, 4, v5
        v_lshl_add_u32 v5, {v(vT)}, 7, v5
        v_add_u32 {v(vXRD)}, {s(sMX)}, v5
        v_xor_b32 {v(vXRD+1)}, 64, {v(vXRD)}
        v_lshrrev_b32 v5, 3, v0
        v_mul_u32_u24 v5, 6144, v5
        v_and_b32 v6, 7, v0
        v_lshl_add_u32 v5, v6, 4, v5
        v_add_u32 v5, {s(sMX)}, v5
        v_mov_b32 {v(WR)}, 0x3f803f80
        v_mov_b32 {v(WR+1)}, 0x3f803f80
        v_mov_b32 {v(WR+2)}, 0x3f803f80
        v_mov_b32 {v(WR+3)}, 0x3f803f80
        s_mov_b64 exec, 0xffffff
        ds_write_b128 v5, {v(WR,4)} offset:{47*128}
        s_mov_b64 exec, -1
        v_lshlrev_b32 v5, 2, {v(vG)}
        s_cmp_eq_u32 {s(sROLE)}, 0
        s_cselect_b64 vcc, -1, 0
        s_mul_i32 s3, {s(sWAVE)}, 44
        s_add_u32 s3, s3, {s(sROW0)}
        v_cndmask_b32 v5, {v(vT)}, v5, vcc
        v_add_u32 {v(vTOK)}, s3, v5
        v_add_u32 {v(vTOK+1)}, 16, {v(vTOK)}
        v_add_u32 {v(vTOK+2)}, 32, {v(vTOK)}
        s_mul_i32 s3, {s(sWAVE)}, 41
        s_sub_u32 s3, 132, s3
        v_add_u32 v6, s3, {v(vTOK+2)}
        v_cmp_lt_u32 vcc, 11, v5
        v_cndmask_b32 {v(vTOK+2)}, {v(vTOK+2)}, v6, vcc
        s_mul_i32 {s(sB2)}, {s(sJ2)}, 74
        s_add_u32 {s(sB2)}, {s(sB2)}, {s(sWAVE)}
        s_mul_i32 {s(sB2)}, {s(sB2)}, 5120
        s_add_u32 {s(sB2)}, {s(sB2)}, {WS_B2}
        """)
        return sg

    def allreduce32(self, st, r, tmp):
        for c in ("quad_perm:[1,0,3,2]", "quad_perm:[2,3,0,1]", "row_half_mirror", "row_mirror"):
            st.append(I(f"v_add_f32_dpp {v(r)}, {v(r)}, {v(r)} {c} row_mask:0xf bank_mask:0xf"))
        st.append(I(f"v_mov_b32 {v(tmp)}, {v(r)}"))
        st.append(I(f"v_permlane16_swap_b32 {v(r)}, {v(tmp)}"))
        st.append(I(f"v_add_f32 {v(r)}, {v(r)}, {v(tmp)}"))

    def side_work(self):
        st = []
        R, U = SD, SD + 12
        P, Q = SD + 32, SD + 48
        st += [I(f"s_mul_i32 s3, {s(sU)}, 96"), I(f"s_add_u32 s3, s3, {WS_ZERO}")]
        for k in range(4):
            st.append(I(f"v_mov_b32 {v(Q+k)}, 0"))
        st.append([I("s_mov_b64 exec, 63"),
                   I(f"buffer_store_dwordx4 {v(Q,4)}, {v(vL16)}, {s(sWS,4)}, s3 offen sc1", tag="sidest"),
                   I("s_mov_b64 exec, -1")])
        st.append(W(vm="st"))
        for k in range(10):
            st.append(I(f"v_lshlrev_b32 {v(U+2*k)}, 16, {v(R+k)}"))
            st.append(I(f"v_and_b32 {v(U+2*k+1)}, 0xffff0000, {v(R+k)}"))
        st.append(I(f"v_add_f32 {v(R)}, {v(U)}, {v(U+1)}"))
        st.append(I(f"v_add_f32 {v(R+1)}, {v(U+2)}, {v(U+3)}"))
        for k in range(4, 20):
            st.append(I(f"v_add_f32 {v(R+(k&1))}, {v(R+(k&1))}, {v(U+k)}"))
        st.append(I(f"v_add_f32 {v(R)}, {v(R)}, {v(R+1)}"))
        self.allreduce32(st, R, R + 1)
        st.append(I(f"v_mul_f32 {v(R)}, {hex(f2u(1.0/640))}, {v(R)}"))
        for k in range(20):
            st.append(I(f"v_sub_f32 {v(U+k)}, {v(U+k)}, {v(R)}"))
        st.append(I(f"v_mul_f32 {v(R+1)}, {v(U)}, {v(U)}"))
        st.append(I(f"v_mul_f32 {v(R+2)}, {v(U+1)}, {v(U+1)}"))
        for k in range(2, 20):
            st.append(I(f"v_fmac_f32 {v(R+1+(k&1))}, {v(U+k)}, {v(U+k)}"))
        st.append(I(f"v_add_f32 {v(R+1)}, {v(R+1)}, {v(R+2)}"))
        self.allreduce32(st, R + 1, R + 2)
        st.append(I(f"v_mov_b32 {v(R+2)}, {hex(f2u(1e-5))}"))
        st.append(I(f"v_fmac_f32 {v(R+2)}, {hex(f2u(1.0/640))}, {v(R+1)}"))
        st.append(I(f"v_rsq_f32 {v(R+1)}, {v(R+2)}"))
        st.append([I("s_mov_b32 exec_lo, 1"), I("s_mov_b32 exec_hi, 1"),
                   I(f"buffer_store_dwordx2 {v(R,2)}, {v(R+10)}, {s(sST,4)}, 0 offen sc1", tag="sidest"),
                   I("s_mov_b64 exec, -1")])
        st += [I(f"s_lshl_b32 s3, {s(sWAVE)}, 11"), I(f"s_add_u32 s3, s3, {L_RP}"),
               I(f"v_add_u32 {v(U)}, s3, {v(vL16)}"),
               I(f"v_lshrrev_b32 {v(U+1)}, 2, v0"),
               I(f"v_lshlrev_b32 {v(U+1)}, 7, {v(U+1)}"),
               I(f"v_and_b32 {v(U+2)}, 3, v0"),
               I(f"v_lshl_add_u32 {v(U+1)}, {v(U+2)}, 3, {v(U+1)}"),
               I(f"v_add_u32 {v(U+1)}, s3, {v(U+1)}")]
        st.append(W(vm="rp"))
        for hh in range(2):
            st.append(I(f"ds_write_b128 {v(U)}, {v(P+8*hh,4)}"))
            st.append(I(f"ds_write_b128 {v(U)}, {v(P+8*hh+4,4)} offset:1024"))
            for c in range(4):
                st.append(I(f"ds_read_b64_tr_b16 {v(Q+4*c+2*hh,2)}, {v(U+1)} offset:{32*c}", tag=f"rpr"))
        st.append(W(lg="rpr"))
        for c in range(4):
            st.append(I(f"buffer_store_dwordx4 {v(Q+4*c,4)}, {v(R+11)}, {s(sWS,4)}, {s(sRPO+c)} offen sc1", tag="sidest"))
        return st

    def rd_w(self, G):
        n, cb = divmod(G, 10)
        st, kk = n >> 1, n & 1
        slot = st % 4
        base = vWRD + (slot >> 1) * 2 + (cb & 1)
        r = WR + (G % 5) * 4
        out = []
        for hh in range(2):
            off = L_W + (slot & 1) * 20480 + (32 * kk + 4 * hh) * 320 + 32 * cb
            out.append(I(f"ds_read_b64_tr_b16 {v(r+2*hh,2)}, {v(base)} offset:{off}", tag=f"w{G}"))
        return out

    def rd_x(self, n, rb):
        st, kk = n >> 1, n & 1
        return I(f"ds_read_b128 {v(XR+12*kk+4*rb,4)}, {v(vXRD+kk)} offset:{(st%3)*6144+rb*2048}", tag=f"x{n}")

    def b2_agpr_loads(self):
        st = []
        for q in range(12):
            if q < 7:
                st.append(I(f"s_add_u32 {s(sSO)}, {s(sB2)}, {q*20480}"))
            else:
                st.append(I(f"s_mul_i32 {s(sSO)}, {s(sWAVE)}, {4*5120}"))
                st.append(I(f"s_add_u32 {s(sSO)}, {s(sSO)}, {s(sB2)}"))
                st.append(I(f"s_add_u32 {s(sSO)}, {s(sSO)}, {(54+q-7)*5120}"))
            for cb in range(5):
                vo, off = (vL16, cb * 1024) if cb < 4 else (vL16B, 0)
                st.append(I(f"buffer_load_dwordx4 {a_(20*q+4*cb,4)}, {v(vo)}, {s(sWS,4)}, {s(sSO)} offen offset:{off} sc1", tag=f"b2_{q}"))
        return st

    def kloop(self, kv):
        lab = "kv" if kv else "hq"
        pre = Seg()
        pre.wait(vm="S0")
        pre.e("s_barrier")
        self.stamp(pre, "k0")
        for rb in range(3):
            pre.append(self.rd_x(0, rb))
        for G in range(4):
            pre.extend(self.rd_w(G))
        pre.wait(lg=["x0", "w0"])
        mf = []
        for n in range(20):
            for cb in range(10):
                for rb in range(3):
                    G = 10 * n + cb
                    wf, xf = v(WR + (G % 5) * 4, 4), v(XR + 12 * (n & 1) + 4 * rb, 4)
                    A, B = (xf, wf) if kv else (wf, xf)
                    c = v(acc(rb, cb), 4)
                    mf.append(I(f"v_mfma_f32_16x16x32_bf16 {c}, {A}, {B}, {c if n else 0}"))
        gp = Gaps(mf)
        arrive_stage = self.o.get("arrive_stage", 3)
        for n in range(20):
            st, kk = n >> 1, n & 1
            for cb in range(10):
                G = 10 * n + cb
                k = 3 * G
                if kk == 1 and cb == 6 and st < 9:
                    tags = [f"S{st+1}"]
                    if st + 1 == arrive_stage:
                        tags.append("sidest")
                    gp.put(k, W(vm=tags), I("s_barrier"))
                if G + 1 < 200:
                    tags = [f"w{G+1}"] + ([f"x{n+1}"] if cb == 9 else [])
                    gp.put(k + 2, W(lg=tags))
                if G + 4 < 200:
                    a, b = self.rd_w(G + 4)
                    gp.put(k, a)
                    gp.put(k + 1, b)
                if n < 19 and cb in (6, 7, 8):
                    gp.put(k + 2, self.rd_x(n + 1, cb - 6))
            if st + 3 <= 9:
                k0 = 30 * n
                if kk == 0:
                    for m in range(5):
                        a, b = self.dma_w(st + 3, m)
                        gp.g[k0 + 6 * m + 1].insert(0, a)
                        gp.put(k0 + 6 * m + 2, *b)
                    gp.g[k0 + 28].insert(0, I(f"s_add_u32 {s(sWOFF)}, {s(sWOFF)}, {s(sWSTEP)}"))
                else:
                    pos = [2, 8, 11, 17, 23, 29]
                    for m in range(6):
                        a, b = self.dma_x(st + 3, m)
                        gp.g[k0 + pos[m] - 1].insert(0, a)
                        gp.put(k0 + pos[m], *b)
                    gp.g[k0 + 30].insert(0, I(f"s_add_u32 {s(sXOFF)}, {s(sXOFF)}, 128"))
        k = 60 * arrive_stage + 3
        gp.g[k].insert(0, I(f"s_cmp_lg_u32 {s(sWAVE)}, 0"))
        gp.put(k, I(f"s_cbranch_scc1 L_noarr_{lab}"),
               I("s_and_b32 s3, s2, 63"), I("s_lshl_b32 s3, s3, 2"), I("v_mov_b32 v5, 1"), I("v_mov_b32 v6, 0"),
               I("s_mov_b64 exec, 1"),
               I(f"buffer_atomic_add v5, v6, {s(sDBG,4)}, s3 offen sc1", cond=True),
               I("s_mov_b64 exec, -1"), I(f"L_noarr_{lab}:"))
        kc = self.o.get("check_k", 60 * 8 + 5)
        kl = self.o.get("look_k", 60 * 9 + 5)
        ld = f"buffer_load_dword v5, v6, {s(sDBG,4)}, 0 offen sc1"
        gp.put(kc - 3, I("v_lshlrev_b32 v6, 2, v0"))
        gp.put(kc, I(ld, tag="chk"))
        tmp = Seg()
        tmp.wait(vm="chk")
        tmp.e("v_cmp_ne_u32 vcc, 4, v5")
        self.spin(tmp, f"L_chk_{lab}", ld, "v_cmp_ne_u32 vcc, 4, v5")
        gp.put(kl, *tmp)
        stl = []
        for rb in range(3):
            stl.append(I(f"v_lshlrev_b32 {v(5+rb)}, 3, {v(vTOK+rb)}"))
            if kv:
                stl.append(I(f"buffer_load_dwordx4 {v(SD+8*rb,4)}, {v(5+rb)}, {s(sST,4)}, 0 offen sc1", tag="stat"))
                stl.append(I(f"buffer_load_dwordx4 {v(SD+8*rb+4,4)}, {v(5+rb)}, {s(sST,4)}, 0 offen offset:16 sc1", tag="stat"))
            else:
                stl.append(I(f"buffer_load_dwordx2 {v(SD+2*rb,2)}, {v(5+rb)}, {s(sST,4)}, 0 offen sc1", tag="stat"))
        kk = gp.fill(stl, kl + 1, 600, maxper=1)
        b2 = self.b2_agpr_loads()
        k = kk + 2
        while k < 599:
            pos = 0
            while not b2[0].isvec():
                gp.g[k - 1].insert(pos, b2.pop(0))
                pos += 1
            gp.put(k, b2.pop(0))
            k += 5
        self.b2_rest = [x.t for x in b2], [x.tag for x in b2]
        sg = pre
        sg.extend(gp.flat())
        self.stamp(sg, "kend")
        return sg

    def b2_stream(self):
        return [I(t, tag=g) for t, g in zip(*self.b2_rest)]

    @staticmethod
    def pop_b2(sg, b2, n):
        for _ in range(n):
            while b2 and not b2[0].isvec():
                sg.append(b2.pop(0))
            if b2:
                sg.append(b2.pop(0))

    def epi_hq(self, q):
        sg = Seg()
        b2 = self.b2_stream()
        per = self.o.get("b2_per", 2)
        CS, T, E, O, AD = WR, WR + 8, WR + 16, WR + 24, SD + 8
        A1 = WR + 32
        stride, base = (20 * 4096, WS_PQ) if q else (74 * 4096, WS_A2)
        sg.e(f"s_mul_i32 {s(sT0)}, {s(sTILE)}, {5*4096}")
        sg.e(f"s_add_u32 {s(sT0)}, {s(sT0)}, {base}")
        for rb in range(3):
            sg.e(f"""
            v_lshrrev_b32 v5, 6, {v(vTOK+rb)}
            v_mul_u32_u24 v5, {stride}, v5
            v_bfe_u32 v6, {v(vTOK+rb)}, 4, 2
            v_lshl_add_u32 v5, v6, 10, v5
            v_lshl_add_u32 v5, {v(vG)}, 8, v5
            v_and_b32 v6, 15, {v(vTOK+rb)}
            v_lshl_add_u32 v5, v6, 4, v5
            v_or_b32 v6, {hex(HUGE)}, v5
            v_cmp_lt_u32 vcc, 2047, {v(vTOK+rb)}
            v_cndmask_b32 {v(AD+rb)}, v5, v6, vcc
            """)
        sg.e(f"""
        v_cmp_eq_u32 vcc, 15, {v(vT)}
        v_cndmask_b32 {v(AD+2)}, {v(AD+2)}, v6, vcc
        s_mov_b32 {s(sC0)}, {hex(f2u(LN2))}
        s_mov_b32 {s(sC0+1)}, {hex(f2u(1e-6))}
        """)
        sg.wait(vm="stat")
        for rb in range(3):
            sg.e(f"v_mul_f32 {v(SD+2*rb+1)}, {hex(f2u(LOG2E if q else -LOG2E))}, {v(SD+2*rb+1)}")
        pairs = [(0, 1), (2, 3), (5, 6), (7, 8), (4, 9)] if q else [(0, 1), (2, 3), (4, 5), (6, 7), (8, 9)]
        u = 0
        for c, pr in enumerate(pairs):
            last = (c == 4 and not q)
            if last:
                sg.e(f"s_cmp_eq_u32 {s(sTILE)}, 10")
                sg.e("s_cbranch_scc1 L_h_skip")
            for hb, cb in enumerate(pr):
                for j in range(2):
                    sg.e(f"v_mov_b64_dpp {v(CS+4*hb+2*j,2)}, {v(acc(2,cb)+2*j,2)} row_newbcast:15 row_mask:0xf bank_mask:0xf")
            for rb in range(3):
                ms = v(SD + 2 * rb, 2)
                src = [acc(rb, pr[0]), acc(rb, pr[0]) + 2, acc(rb, pr[1]), acc(rb, pr[1]) + 2]
                for j in range(4):
                    sg.e(f"v_pk_fma_f32 {v(T+2*j,2)}, {v(CS+2*j,2)}, {ms}, {v(src[j],2)} op_sel_hi:[1,0,1] neg_lo:[0,1,0] neg_hi:[0,1,0]")
                for j in range(4):
                    sg.e(f"v_pk_mul_f32 {v(T+2*j,2)}, {v(T+2*j,2)}, {ms} op_sel:[0,1] op_sel_hi:[1,1]")
                o = O + 4 * (u & 1)
                if not q:
                    for j in range(8):
                        sg.e(f"v_exp_f32 {v(E+j)}, {v(T+j)}")
                    for j in range(4):
                        sg.e(f"v_pk_add_f32 {v(E+2*j,2)}, {v(E+2*j,2)}, 1.0 op_sel_hi:[1,0]")
                    for j in range(8):
                        sg.e(f"v_rcp_f32 {v(E+j)}, {v(E+j)}")
                    for j in range(4):
                        sg.e(f"v_pk_mul_f32 {v(T+2*j,2)}, {v(T+2*j,2)}, {v(E+2*j,2)}")
                else:
                    for j in range(8):
                        sg.e(f"v_exp_f32 {v(E+j)}, {v(T+j)} clamp")
                    for j in range(4):
                        sg.e(f"v_pk_fma_f32 {v(T+2*j,2)}, {v(T+2*j,2)}, {s(sC0,2)}, 1.0 op_sel_hi:[1,0,0]")
                    for j in range(8):
                        sg.e(f"v_max_f32 {v(T+j)}, {v(T+j)}, {v(E+j)}")
                    for j in range(4):
                        sg.e(f"v_pk_add_f32 {v(T+2*j,2)}, {v(T+2*j,2)}, {s(sC0,2)} op_sel:[0,1] op_sel_hi:[1,1]")
                for j in range(4):
                    sg.e(f"v_cvt_pk_bf16_f32 {v(o+j)}, {v(T+2*j)}, {v(T+2*j+1)}")
                sg.e(f"buffer_store_dwordx4 {v(o,4)}, {v(AD+rb)}, {s(sWS,4)}, {s(sT0)} offen sc1", tag="pub", cond=last)
                u += 1
                if c < 4:
                    self.pop_b2(sg, b2, per)
            if last:
                sg.e("L_h_skip:")
            else:
                sg.e(f"s_add_u32 {s(sT0)}, {s(sT0)}, 4096")
        self.stamp(sg, "epi")
        self.pop_b2(sg, b2, 100)
        sg.e(f"s_lshl_b32 {s(sCTR)}, {s(sI)}, 7")
        sg.e(f"s_add_u32 {s(sCTR)}, {s(sCTR)}, {WS_CROW}")
        return sg

    def epi_kv(self):
        sg = Seg()
        b2 = self.b2_stream()
        NM, RS = SD + 24, SD + 36
        CS = SD + 48
        VAL = SD + 58
        PK = WR
        T, E = SD, SD + 12
        sg.e(f"""
        v_or_b32 v7, 48, {v(vT)}
        v_lshlrev_b32 v7, 2, v7
        s_mov_b32 {s(sC0)}, {hex(f2u(LN2))}
        s_mov_b32 {s(sC0+1)}, {hex(f2u(1e-6))}
        v_mov_b32 v5, 0x3f803f80
        """)
        for rb in range(3):
            sg.e(f"v_cmp_gt_u32 vcc, 2048, {v(vTOK+rb)}")
            sg.e(f"v_cndmask_b32 {v(VAL+2*rb)}, 0, v5, vcc")
            sg.e(f"v_mov_b32 {v(VAL+2*rb+1)}, {v(VAL+2*rb)}")
        sg.e(f"""
        v_and_b32 v5, 0xffff, {v(VAL+5)}
        v_cmp_eq_u32 vcc, 3, {v(vG)}
        v_cndmask_b32 {v(VAL+5)}, {v(VAL+5)}, v5, vcc
        """)
        for cb in range(10):
            sg.e(f"ds_bpermute_b32 {v(CS+cb)}, v7, {v(acc(2,cb)+3)}", tag="cs")
        sg.wait(vm="stat")
        for k in range(12):
            sg.e(f"v_mov_b32 {v(NM+k)}, {v(SD+2*k)}")
            sg.e(f"v_mul_f32 {v(RS+k)}, {hex(f2u(LOG2E))}, {v(SD+2*k+1)}")
        sg.e(f"v_cndmask_b32 {v(RS+11)}, {v(RS+11)}, 0, vcc")
        sg.wait(lg="cs")
        for cb in [5, 0, 6, 1, 7, 2, 8, 3, 9, 4]:
            cs = v(CS + (cb & ~1), 2)
            sel = f"op_sel:[0,{cb&1},0] op_sel_hi:[1,{cb&1},1]"
            for j in range(6):
                sg.e(f"v_pk_fma_f32 {v(T+2*j,2)}, {v(NM+2*j,2)}, {cs}, {v(acc(0,cb)+2*j,2)} {sel} neg_lo:[1,0,0] neg_hi:[1,0,0]")
            for j in range(6):
                sg.e(f"v_pk_mul_f32 {v(T+2*j,2)}, {v(T+2*j,2)}, {v(RS+2*j,2)}")
            if cb < 5:
                for j in range(12):
                    sg.e(f"v_exp_f32 {v(E+j)}, {v(T+j)} clamp")
                for j in range(6):
                    sg.e(f"v_pk_fma_f32 {v(T+2*j,2)}, {v(T+2*j,2)}, {s(sC0,2)}, 1.0 op_sel_hi:[1,0,0]")
                for j in range(12):
                    sg.e(f"v_max_f32 {v(T+j)}, {v(T+j)}, {v(E+j)}")
                for j in range(6):
                    sg.e(f"v_pk_add_f32 {v(T+2*j,2)}, {v(T+2*j,2)}, {s(sC0,2)} op_sel:[0,1] op_sel_hi:[1,1]")
            for j in range(6):
                sg.e(f"v_cvt_pk_bf16_f32 {v(PK+6*cb+j)}, {v(T+2*j)}, {v(T+2*j+1)}")
            self.pop_b2(sg, b2, self.o.get("b2_per", 2))
        BA = SD
        self.kv_bases(sg, BA, s(sMX))
        sg.e(f"v_lshl_add_u32 {v(BA+5)}, {v(vT)}, 2, {s(sMX)}")
        D = ACC
        blks = [("kv", db, eb) for db, eb in KVBLK] + [("z", db, 0) for db in range(5)]
        for half in range(2):
            for k, (kind, db, eb) in enumerate(blks):
                d = v(D + 4 * k, 4)
                if kind == "kv":
                    A, B = PK + 6 * db, PK + 6 * (5 + eb)
                else:
                    A, B = VAL, PK + 6 * db
                if half == 0:
                    sg.e(f"v_mfma_f32_16x16x16_bf16 {d}, {v(A+4,2)}, {v(B+4,2)}, 0")
                else:
                    sg.e(f"v_mfma_f32_16x16x32_bf16 {d}, {v(A,4)}, {v(B,4)}, {d}")
        for k, (kind, db, eb) in enumerate(blks):
            if kind == "kv":
                m = mask_kv(db, eb)
                sg.e(f"s_mov_b32 exec_lo, {hex(m & 0xffffffff)}")
                sg.e(f"s_mov_b32 exec_hi, {hex(m >> 32)}")
                sg.e(f"ds_write_b128 {v(BA+eb)}, {v(D+4*k,4)} offset:{64*db}")
            else:
                if db == 0:
                    sg.e("s_mov_b64 exec, 0xffff")
                sg.e(f"ds_write_b32 {v(BA+5)}, {v(D+4*k)} offset:{6400+64*db}")
        sg.e(f"""
        s_mov_b64 exec, -1
        s_lshl_b32 s3, {s(sWAVE)}, 8
        v_lshl_add_u32 v5, v0, 2, s3
        v_add_u32 v6, {L_X}, v5
        v_or_b32 v7, {hex(HUGE)}, v5
        v_cmp_lt_u32 vcc, {143*4}, v5
        v_cndmask_b32 v7, v5, v7, vcc
        s_mul_i32 {s(sT0)}, {s(sTILE)}, 7168
        s_add_u32 {s(sT0)}, {s(sT0)}, {WS_KV}
        s_add_u32 {s(sT1)}, {s(sT0)}, 4096
        s_waitcnt lgkmcnt(0)
        s_barrier
        """)
        for q in range(7):
            sg.e(f"ds_read2st64_b32 {v(D+4*q,2)}, v6 offset0:{4*q} offset1:{4*q+72}", tag=f"r{q}")
            sg.e(f"ds_read2st64_b32 {v(D+4*q+2,2)}, v6 offset0:{4*q+144} offset1:{4*q+216}", tag=f"r{q}")
        for q in range(7):
            sg.wait(lg=f"r{q}")
            sg.e(f"v_pk_add_f32 {v(D+4*q,2)}, {v(D+4*q,2)}, {v(D+4*q+2,2)}")
            sg.e(f"v_add_f32 {v(D+4*q)}, {v(D+4*q)}, {v(D+4*q+1)}")
            so, off = (sT0, 1024 * q) if q < 4 else (sT1, 1024 * (q - 4))
            sg.e(f"buffer_atomic_add_f32 {v(D+4*q)}, {'v7' if q == 6 else 'v5'}, {s(sWS,4)}, {s(so)} offen offset:{off}", tag="pub")
        self.stamp(sg, "epi")
        self.pop_b2(sg, b2, 100)
        sg.e(f"s_lshl_b32 {s(sCTR)}, {s(sTILE)}, 7")
        sg.e(f"s_add_u32 {s(sCTR)}, {s(sCTR)}, {WS_CKV}")
        return sg

    def kv_bases(self, sg, BA, sbase):
        sg.e(f"v_mul_u32_u24 v5, 80, {v(vT)}")
        sg.e(f"v_lshl_add_u32 v5, {v(vG)}, 4, v5")
        sg.e(f"v_add_u32 {v(BA)}, {sbase}, v5")
        for eb in range(1, 5):
            lo = head(16 * eb)
            sg.e(f"v_add_u32 {v(BA+eb)}, {80*(16*eb-lo)}, {v(BA)}")
            if head(16 * eb + 15) != lo:
                cut = 20 * (lo + 1) - 16 * eb
                sg.e(f"v_subrev_u32 v5, 80, {v(BA+eb)}")
                sg.e(f"v_cmp_le_u32 vcc, {cut}, {v(vT)}")
                sg.e(f"v_cndmask_b32 {v(BA+eb)}, {v(BA+eb)}, v5, vcc")

    def phase2(self):
        sg = Seg()
        AC2 = 8
        RING = 88
        vA = 200
        vA8 = 204
        vXR = 208
        vOUT = 218
        vFR = 223
        vFW = 228
        vBL = 232
        vPQ = 234
        vP = 244
        vO16, vO8 = 248, 249
        BA = 250
        aB = 240

        def ac2(r, cb):
            return AC2 + (r * 5 + cb) * 4

        sg.e("L_join:")
        sg.wait(vm="pub")
        sg.e("s_barrier")
        self.stamp(sg, "acked")
        sg.e(f"""
        s_cmp_lg_u32 {s(sWAVE)}, 0
        s_cbranch_scc1 L_noarr2
        v_mov_b32 v5, 1
        v_mov_b32 v6, 0
        s_mov_b64 exec, 1
        """)
        sg.e(f"buffer_atomic_add v5, v6, {s(sWS,4)}, {s(sCTR)} offen sc1", cond=True)
        sg.e("s_mov_b64 exec, -1\nL_noarr2:")
        sg.e(f"s_mul_i32 {s(sMW)}, {s(sWAVE)}, 35840")
        for n in range(7, 14):
            sg.e(f"s_add_u32 {s(sSO)}, {s(sB2)}, {n*20480}")
            sg.e(f"s_add_u32 m0, {s(sMW)}, {L_B2+(n-7)*5120}")
            for cb in range(4):
                sg.e(f"buffer_load_dwordx4 {v(vL16)}, {s(sWS,4)}, {s(sSO)} offen offset:{cb*1024} sc1 lds", tag=f"bl_{n}")
            sg.e(f"s_add_u32 m0, {s(sMW)}, {L_B2+(n-7)*5120+4096}")
            sg.e(f"buffer_load_dwordx4 {v(vL16B)}, {s(sWS,4)}, {s(sSO)} offen sc1 lds", tag=f"bl_{n}")
        sg.e(f"""
        v_add_u32 {v(vBL)}, {s(sMW)}, {v(vL16)}
        s_mul_i32 {s(sABASE)}, {s(sI2)}, {74*4096}
        s_add_u32 {s(sABASE)}, {s(sABASE)}, {WS_A2}
        v_mul_u32_u24 v5, 336, {v(vT)}
        v_lshl_add_u32 v5, {v(vG)}, 4, v5
        v_add_u32 v5, {s(sMW)}, v5
        """)
        for r in range(4):
            sg.e(f"""
            s_add_u32 s3, {s(sWAVE)}, {r+1}
            s_and_b32 s3, s3, 3
            s_lshl_b32 {s(sT0)}, s3, 10
            s_add_u32 {s(sT0)}, {s(sT0)}, {s(sABASE)}
            v_add_u32 {v(vA+r)}, {s(sT0)}, {v(vL16)}
            v_lshl_add_u32 {v(vA8+r)}, v0, 3, {s(sT0)}
            s_mul_i32 s3, s3, {16*336}
            v_add_u32 {v(vFW+r)}, s3, v5
            """)
        sg.e(f"""
        s_lshl_b32 {s(sT0)}, {s(sWAVE)}, 6
        s_mul_i32 {s(sT1)}, {s(sI2)}, {64*1280}
        s_mul_i32 {s(sT2)}, {s(sJ2)}, 160
        s_add_u32 {s(sT1)}, {s(sT1)}, {s(sT2)}
        """)
        for q in range(5):
            sg.e(f"""
            v_add_u32 v5, {s(sT0)}, v0
            v_mul_u32_u24 v6, 3277, v5
            v_lshrrev_b32 v6, 16, v6
            v_mul_u32_u24 v7, 20, v6
            v_sub_u32 v5, v5, v7
            v_mul_u32_u24 v7, 336, v6
            v_lshl_add_u32 {v(vFR+q)}, v5, 4, v7
            v_mul_u32_u24 v7, 1280, v6
            v_lshl_add_u32 v7, v5, 3, v7
            v_add_u32 {v(vOUT+q)}, {s(sT1)}, v7
            s_add_u32 {s(sT0)}, {s(sT0)}, 256
            """)
            sg.e(f"buffer_load_dwordx2 {v(vXR+2*q,2)}, {v(vOUT+q)}, {s(sX,4)}, 0 offen", tag="xres")
        self.kv_bases(sg, BA, str(L_KV))
        sg.e(f"""
        v_lshlrev_b32 {v(BA+5)}, 4, {v(vG)}
        v_add_u32 {v(BA+5)}, {L_KV+6400}, {v(BA+5)}
        s_lshr_b32 {s(sT0)}, {s(sJ2)}, 1
        s_and_b32 {s(sT1)}, {s(sJ2)}, 1
        s_mul_i32 {s(sT0)}, {s(sT0)}, {5*4096}
        s_lshl_b32 {s(sT2)}, {s(sWAVE)}, 10
        s_add_u32 {s(sT0)}, {s(sT0)}, {s(sT2)}
        s_mul_i32 {s(sT2)}, {s(sI2)}, {20*4096}
        s_add_u32 {s(sT2)}, {s(sT2)}, {s(sT0)}
        s_add_u32 {s(sT2)}, {s(sT2)}, {WS_PQ}
        s_add_u32 {s(sT3)}, {s(sABASE)}, {s(sT0)}
        s_add_u32 {s(sT3)}, {s(sT3)}, {54*4096}
        s_lshl_b32 s3, {s(sT1)}, 13
        s_add_u32 {s(sT4)}, {s(sT2)}, s3
        s_add_u32 {s(sT5)}, {s(sT3)}, s3
        s_lshl_b32 s3, {s(sT1)}, 3
        s_add_u32 {s(sT2)}, {s(sT2)}, s3
        s_add_u32 {s(sT2)}, {s(sT2)}, {4*4096}
        s_lshl_b32 s3, {s(sT1)}, 9
        s_add_u32 {s(sT3)}, {s(sT3)}, s3
        s_add_u32 {s(sT3)}, {s(sT3)}, {4*4096}
        v_lshlrev_b32 {v(vO8)}, 3, v0
        """)
        poll = f"buffer_load_dword {v(vP+2)}, {v(vP)}, {s(sWS,4)}, 0 offen sc1"
        sg.e(f"""
        s_cmp_lg_u32 {s(sWAVE)}, 0
        s_cbranch_scc1 L_s1_done
        s_mul_i32 s3, {s(sI2)}, {64*349}
        s_lshr_b32 {s(sT0)}, s3, 16
        s_add_u32 s3, s3, {63*349}
        s_lshr_b32 {s(sT1)}, s3, 16
        s_add_u32 s3, {s(sJ2)}, 16
        v_mov_b32 {v(vP)}, {s(sT0)}
        v_mov_b32 {v(vP+1)}, 15
        v_writelane_b32 {v(vP)}, {s(sT1)}, 1
        v_writelane_b32 {v(vP)}, s3, 2
        v_writelane_b32 {v(vP+1)}, 11, 2
        v_lshlrev_b32 {v(vP)}, 7, {v(vP)}
        v_add_u32 {v(vP)}, {WS_ZERO}, {v(vP)}
        s_mov_b64 exec, 7
        s_mov_b64 vcc, -1
        """)
        self.spin(sg, "L_s1", poll, f"v_cmp_ne_u32 vcc, {v(vP+1)}, {v(vP+2)}")
        sg.e("s_mov_b64 exec, -1\nL_s1_done:\ns_barrier")
        self.stamp(sg, "s1")
        sg.e(f"""
        s_mul_i32 s3, {s(sJ2)}, 7168
        s_lshl_b32 {s(sT0)}, {s(sWAVE)}, 10
        s_add_u32 s3, s3, {s(sT0)}
        s_add_u32 s3, s3, {WS_KV}
        s_add_u32 m0, {s(sT0)}, {L_KV}
        """)
        sg.e(f"buffer_load_dwordx4 {v(vL16)}, {s(sWS,4)}, s3 offen sc1 lds", tag="kvl")
        sg.e(f"s_add_u32 m0, {s(sT0)}, {L_KV+4096}")
        sg.e(f"buffer_load_dwordx4 {v(vL16B)}, {s(sWS,4)}, s3 offen sc1 lds", tag="kvl")
        sg.e(f"buffer_load_dwordx4 {v(vPQ,4)}, {v(vL16)}, {s(sWS,4)}, {s(sT4)} offen sc1", tag="pq")
        sg.e(f"buffer_load_dwordx4 {v(vPQ+4,4)}, {v(vL16B)}, {s(sWS,4)}, {s(sT4)} offen sc1", tag="pq")
        sg.e(f"buffer_load_dwordx2 {v(vPQ+8,2)}, {v(vL16)}, {s(sWS,4)}, {s(sT2)} offen sc1", tag="pq")
        sg.e(f"s_lshl_b32 {s(sASTR)}, {s(sWAVE)}, 12")

        def a_loads(n):
            st = []
            if n == 13:
                st.append(I(f"s_cmp_ge_u32 {s(sWAVE)}, 2"))
                st.append(I(f"s_cselect_b32 s3, {hex(HUGE)}, 0"))
            for r in range(4):
                ad = vA + r
                if n == 13:
                    st.append(I(f"v_or_b32 {v(vP+r)}, s3, {v(vA+r)}"))
                    ad = vP + r
                st.append(I(f"buffer_load_dwordx4 {v(RING+16*(n%7)+4*r,4)}, {v(ad)}, {s(sWS,4)}, {s(sASTR)} offen sc1", tag=f"a{n}"))
            st.append(I(f"s_add_u32 {s(sASTR)}, {s(sASTR)}, 16384"))
            return st
        for n in range(7):
            sg.extend(a_loads(n))
        sg.wait(vm="kvl")
        sg.e("s_barrier")
        RAW, OP, NUM = AC2, AC2 + 32, AC2 + 48
        DEN = NUM + 20
        blks = [("z", db, 0) for db in range(5)] + [("kv", db, eb) for db, eb in KVBLK]

        def rd(k):
            kind, db, eb = blks[k]
            sg.e(f"ds_read_b128 {v(RAW+4*(k%8),4)}, {v(BA+(5 if kind == 'z' else eb))} offset:{64*db}", tag=f"kv{k}")
        for k in range(8):
            rd(k)
        sg.wait(vm="pq")
        seen = set()
        for k, (kind, db, eb) in enumerate(blks):
            m = mask_z(db) if kind == "z" else mask_kv(db, eb)
            r, o = RAW + 4 * (k % 8), OP + 2 * (k % 8)
            sg.e(f"s_mov_b32 vcc_lo, {hex(m & 0xffffffff)}")
            sg.e(f"s_mov_b32 vcc_hi, {hex(m >> 32)}")
            sg.wait(lg=f"kv{k}")
            sg.e(f"v_cvt_pk_bf16_f32 {v(o)}, {v(r)}, {v(r+1)}")
            sg.e(f"v_cvt_pk_bf16_f32 {v(o+1)}, {v(r+2)}, {v(r+3)}")
            if m != (1 << 64) - 1:
                sg.e(f"v_cndmask_b32 {v(o)}, 0, {v(o)}, vcc")
                sg.e(f"v_cndmask_b32 {v(o+1)}, 0, {v(o+1)}, vcc")
            if k + 8 < len(blks):
                rd(k + 8)
            d = DEN if kind == "z" else NUM + 4 * eb
            sg.e(f"v_mfma_f32_16x16x16_bf16 {v(d,4)}, {v(o,2)}, {v(vPQ+2*db,2)}, {v(d,4) if d in seen else 0}")
            seen.add(d)
        RC = RAW
        for h in range(4):
            sg.e(f"v_add_f32 {v(RC+h)}, {hex(f2u(1e-6))}, {v(DEN+h)}")
        for h in range(4):
            sg.e(f"v_rcp_f32 {v(RC+h)}, -{v(RC+h)}")
        SC = RAW + 4
        for b in range(1, 4):
            sg.e(f"v_cmp_gt_u32 vcc, {b}, {v(vG)}")
            sg.e(f"v_cndmask_b32 {v(SC+b)}, {v(RC+b)}, {v(RC+b-1)}, vcc")
        OO = vPQ
        for b in range(5):
            sc = RC if b == 0 else (RC + 3 if b == 4 else SC + b)
            for j in range(4):
                sg.e(f"v_mul_f32 {v(NUM+4*b+j)}, {v(NUM+4*b+j)}, {v(sc)}")
            for j in range(2):
                sg.e(f"v_cvt_pk_bf16_f32 {v(OO+2*b+j)}, {v(NUM+4*b+2*j)}, {v(NUM+4*b+2*j+1)}")
        sg.e(f"buffer_store_dwordx4 {v(OO,4)}, {v(vL16)}, {s(sWS,4)}, {s(sT5)} offen sc1", tag="ost")
        sg.e(f"buffer_store_dwordx4 {v(OO+4,4)}, {v(vL16B)}, {s(sWS,4)}, {s(sT5)} offen sc1", tag="ost")
        sg.e(f"buffer_store_dwordx2 {v(OO+8,2)}, {v(vO8)}, {s(sWS,4)}, {s(sT3)} offen sc1", tag="ost")
        self.stamp(sg, "opiece")
        mf = []
        for n in range(14):
            for cb in range(5):
                for r in range(4):
                    b = a_(20 * n + 4 * cb, 4) if n < 7 else a_(aB + 4 * ((5 * (n - 7) + cb) % 4), 4)
                    c = v(ac2(r, cb), 4)
                    mf.append(I(f"v_mfma_f32_16x16x32_bf16 {c}, {b}, {v(RING+16*(n%7)+4*r,4)}, {c if n else 0}"))
        def oreg(r, m):
            f = 5 * r + m
            return RING + 4 * f
        for r in range(4):
            for m in range(5):
                for cb in range(5):
                    c = v(ac2(r, cb), 4)
                    mf.append(I(f"v_mfma_f32_16x16x32_bf16 {c}, {a_(140+20*m+4*cb,4)}, {v(oreg(r,m),4)}, {c}"))
        gp = Gaps(mf)
        sg.wait(vm=["a0", "b2_0"])

        def rd_b(F):
            n, cb = divmod(F, 5)
            return I(f"ds_read_b128 {a_(aB+4*(F%4),4)}, {v(vBL)} offset:{L_B2+n*5120+cb*1024}", tag=f"bf{F}")
        for n in range(14):
            k0 = 20 * n
            if n < 13:
                tags = [f"a{n+1}"] + ([f"b2_{n+1}"] if n + 1 < 7 else [])
                gp.put(k0 + 19, W(vm=tags))
            for cb in range(5):
                F = 5 * (n - 7) + cb
                k = k0 + 4 * cb
                if 0 <= F + 1 < 35:
                    gp.put(k + 3, W(lg=f"bf{F+1}"))
                if 0 <= F + 3 < 35:
                    if (F + 3) % 5 == 0:
                        gp.put(k, W(vm=f"bl_{7+(F+3)//5}"))
                    gp.put(k, rd_b(F + 3))
            if 1 <= n <= 7:
                st = a_loads(n + 6)
                k = k0 + 1
                for x in st:
                    gp.put(k, x)
                    if x.kind == "vmem":
                        k += 4
        na = self.o.get("o_arrive", 4)
        gp.put(20 * na + 2, W(vm="ost"),
               I(f"s_lshr_b32 s3, {s(sJ2)}, 1"), I(f"s_lshl_b32 {s(sT0)}, {s(sI2)}, 2"), I(f"s_add_u32 s3, s3, {s(sT0)}"),
               I(f"s_lshl_b32 s3, s3, 7"), I(f"s_add_u32 s3, s3, {WS_CO}"),
               I("v_mov_b32 v5, 1"), I("v_mov_b32 v6, 0"), I("s_mov_b64 exec, 1"),
               I(f"buffer_atomic_add v5, v6, {s(sWS,4)}, s3 offen sc1"), I("s_mov_b64 exec, -1"))
        gp.put(20 * na + 6, I(f"s_add_u32 {s(sT0)}, {s(sT0)}, {s(sWAVE)}"), I(f"s_lshl_b32 {s(sT0)}, {s(sT0)}, 7"),
               I(f"s_add_u32 {s(sT0)}, {s(sT0)}, {WS_CO}"))
        npoll, nlook = self.o.get("o_poll", 8), self.o.get("o_look", 10)
        poll2 = f"buffer_load_dword v5, v6, {s(sWS,4)}, {s(sT0)} offen sc1"
        gp.put(20 * npoll + 2, I(poll2, tag="p2"))
        tmp = Seg()
        tmp.wait(vm="p2")
        tmp.e("v_cmp_ne_u32 vcc, 8, v5")
        self.spin(tmp, "L_s2", poll2, "v_cmp_ne_u32 vcc, 8, v5")
        tmp.e(f"s_mul_i32 {s(sASTR)}, {s(sWAVE)}, {5*4096}")
        tmp.e(f"s_add_u32 {s(sASTR)}, {s(sASTR)}, {54*4096}")
        gp.put(20 * nlook + 2, *tmp)
        for m in range(1, 5):
            gp.put(20 * nlook + 3, I(f"s_add_u32 {s(sT0+m)}, {s(sASTR)}, {m*4096}"))
        k = 20 * nlook + 5
        for r in range(4):
            for m in range(5):
                f = 5 * r + m
                free_after = 20 * (7 + f // 4 + 1)
                k = max(k, free_after + 1)
                so = s(sASTR) if m == 0 else s(sT0 + m)
                if m < 4:
                    gp.put(k, I(f"buffer_load_dwordx4 {v(oreg(r,m),4)}, {v(vA+r)}, {s(sWS,4)}, {so} offen sc1", tag=f"o{r}"))
                else:
                    gp.put(k, I(f"buffer_load_dwordx2 {v(oreg(r,m),2)}, {v(vA8+r)}, {s(sWS,4)}, {so} offen sc1", tag=f"o{r}"))
                    gp.put(k + 1, I(f"buffer_load_dwordx2 {v(oreg(r,m)+2,2)}, {v(vA8+r)}, {s(sWS,4)}, {so} offen offset:512 sc1", tag=f"o{r}"))
                k += 3
        for r in range(4):
            gp.put(280 + 25 * r - 1, W(vm=[f"o{r}"] + [f"b2_{q}" for q in range(7, 12)]))
            if r < 3:
                for cb in range(5):
                    gp.put(280 + 25 * (r + 1) + 4 + 4 * cb, I(f"ds_write_b128 {v(vFW+r)}, {v(ac2(r,cb),4)} offset:{64*cb}"))
        sg.extend(gp.flat())
        self.stamp(sg, "k2end")
        for cb in range(5):
            sg.e(f"ds_write_b128 {v(vFW+3)}, {v(ac2(3,cb),4)} offset:{64*cb}")
        F2 = vA
        for q in range(5):
            sg.e(f"v_add_u32 {v(F2+q)}, 71680, {v(vFR+q)}")
        sg.e(f"s_mov_b32 {s(sC0)}, {hex(f2u(-LN2))}")
        sg.e("s_waitcnt lgkmcnt(0)\ns_barrier")
        PS = RING
        order = []
        for q in range(5):
            for ww in range(4):
                base = (vFR if ww < 2 else F2) + q
                order.append(I(f"ds_read_b128 {v(PS+16*q+4*ww,4)}, {v(base)} offset:{35840*(ww&1)}", tag=f"f{q}"))
        sg.extend(order[:12])
        sg.wait(vm="xres")
        XU = AC2
        for q in range(5):
            sg.e(f"v_lshlrev_b32 {v(XU+4*q)}, 16, {v(vXR+2*q)}")
            sg.e(f"v_and_b32 {v(XU+4*q+1)}, 0xffff0000, {v(vXR+2*q)}")
            sg.e(f"v_lshlrev_b32 {v(XU+4*q+2)}, 16, {v(vXR+2*q+1)}")
            sg.e(f"v_and_b32 {v(XU+4*q+3)}, 0xffff0000, {v(vXR+2*q+1)}")
        for q in range(5):
            sg.wait(lg=f"f{q}")
            if q < 2:
                sg.extend(order[12 + 4 * q:16 + 4 * q])
            p = PS + 16 * q
            for j in range(2):
                sg.e(f"v_pk_add_f32 {v(p+2*j,2)}, {v(p+2*j,2)}, {v(p+4+2*j,2)}")
                sg.e(f"v_pk_add_f32 {v(p+8+2*j,2)}, {v(p+8+2*j,2)}, {v(p+12+2*j,2)}")
            for j in range(2):
                sg.e(f"v_pk_add_f32 {v(p+2*j,2)}, {v(p+2*j,2)}, {v(p+8+2*j,2)}")
            for j in range(2):
                sg.e(f"v_pk_fma_f32 {v(p+2*j,2)}, {v(p+2*j,2)}, {s(sC0,2)}, {v(XU+4*q+2*j,2)} op_sel_hi:[1,0,1]")
            for j in range(2):
                sg.e(f"v_cvt_pk_bf16_f32 {v(p+4+j)}, {v(p+2*j)}, {v(p+2*j+1)}")
            sg.e(f"buffer_store_dwordx2 {v(p+4,2)}, {v(vOUT+q)}, {s(sOUT,4)}, 0 offen")
        if self.o["prof"]:
            sg.e("s_waitcnt vmcnt(0)")
            self.stamp(sg, "end")
            sg.e("s_waitcnt lgkmcnt(0)")
            sg.e(f"s_lshl_b32 s3, {s(sU)}, 6")
            sg.e(f"s_add_u32 s3, s3, {WS_PROF}")
            for k in range(len(self.stamps)):
                sg.e(f"v_writelane_b32 v5, {s(sPROF+2*k)}, {k}")
            sg.e(f"v_writelane_b32 v5, {s(sROLE)}, 15")
            sg.e("v_lshlrev_b32 v6, 2, v0\ns_mov_b64 exec, 0xffff")
            sg.e(f"buffer_store_dword v5, v6, {s(sWS,4)}, s3 offen")
        sg.e("L_exit:\ns_endpgm")
        return sg

    def build(self):
        pro = self.prologue()
        self.stage_dma(pro, 0)
        pro.extend(self.side_setup_loads())
        self.stage_dma(pro, 1)
        self.stage_dma(pro, 2)
        pro.extend(self.lds_read_setup())
        for x in self.side_work():
            if isinstance(x, list):
                pro.extend(x)
            else:
                pro.append(x)
        pro.e(f"s_cmp_eq_u32 {s(sROLE)}, 0\ns_cbranch_scc1 L_kv")
        khq = self.kloop(False)
        khq.e(f"s_cmp_eq_u32 {s(sROLE)}, 1\ns_cbranch_scc1 L_q")
        eh = self.epi_hq(False)
        eq = Seg().e("L_q:")
        eq.extend(self.epi_hq(True))
        eq.e("s_branch L_join")
        kkv = Seg().e("L_kv:")
        kkv.extend(self.kloop(True))
        kkv.extend(self.epi_kv())
        kkv.e("s_branch L_join")
        p2 = self.phase2()
        finalize([[pro, khq, eh, p2], [pro, khq, eq, p2], [pro, kkv, p2]])
        body = "".join(render(x) for x in (pro, khq, eh, p2, eq, kkv))
        head = open("cdna_kernels/" + NAME[:-7] + ".s.ref").read().split("; Override launch")[0]
        out = head
        out += f"; @launch grid=(256,1,1) block=(256,1,1) lds={LDS_BYTES}\n"
        out += f"""; Generated by my own script (gen/gen.py): one persistent workgroup per CU.
.amdgcn_target "amdgcn-amd-amdhsa--gfx950"
.text
.globl {NAME}
.p2align 8
.type {NAME},@function
{NAME}:
"""
        out += body
        out += f"""L_code_end:
    s_endpgm
.fill 1056, 4, 0xbf810000
.section .rodata,"a"
.p2align 6
.amdhsa_kernel {NAME}
  .amdhsa_next_free_vgpr 512
  .amdhsa_next_free_sgpr 102
  .amdhsa_accum_offset 256
  .amdhsa_group_segment_fixed_size 0
  .amdhsa_kernarg_size 72
  .amdhsa_user_sgpr_count 2
  .amdhsa_user_sgpr_kernarg_segment_ptr 1
  .amdhsa_system_sgpr_workgroup_id_x 1
.end_amdhsa_kernel
"""
        return out


def assemble_size(text):
    import subprocess, tempfile, os
    d = tempfile.mkdtemp()
    p = os.path.join(d, "k.s")
    open(p, "w").write(text)
    r = subprocess.run(["clang", "-x", "assembler", "-target", "amdgcn-amd-amdhsa", "-mcpu=gfx950", "-c", p, "-o", p + ".o"], capture_output=True, text=True)
    if r.returncode:
        print(r.stderr[:4000])
        raise SystemExit(1)
    r = subprocess.run(["llvm-objdump", "-t", p + ".o"], capture_output=True, text=True)
    sym = {l.split()[-1]: int(l.split()[0], 16) for l in r.stdout.splitlines() if ".text" in l and l.split()[-1].startswith("L_")}
    return sym


def generate(**o):
    g = Gen(**o)
    text = g.build()
    sym = assemble_size(text.replace("CODE_LINES*128", "1280").replace("CODE_LINES", "10"))
    size = sym["L_code_end"] - sym["L_pc"]
    lines = (size + 4095) // 4096
    text = text.replace("CODE_LINES*128", str(lines * 128)).replace("CODE_LINES", str(lines))
    return text, g.stamps, sym


if __name__ == "__main__":
    opts = {}
    out = "cdna_kernels/" + NAME[:-7] + ".s"
    for a in sys.argv[1:]:
        k, val = a.split("=")
        if k == "out":
            out = val
        else:
            opts[k] = int(val)
    text, stamps, sym = generate(**opts)
    open(out, "w").write(text)
    print("wrote", out, "code bytes", sym["L_code_end"], "stamps", stamps)
    print({k: x for k, x in sorted(sym.items(), key=lambda kv: kv[1])})
```

```python
import re

TRANS = ("v_exp_f32", "v_log_f32", "v_rcp_f32", "v_rsq_f32", "v_sqrt_f32")


class I:
    __slots__ = ("t", "tag", "cond", "wvm", "wlg", "nvm", "nlg", "pad", "kind", "rd", "wr", "mn", "srcc", "srcab")

    def __init__(self, text, tag=None, cond=False, wvm=None, wlg=None):
        self.t = text
        self.tag = tag
        self.cond = cond
        self.wvm = wvm
        self.wlg = wlg
        self.nvm = None
        self.nlg = None
        self.pad = 0
        self.parse()

    def parse(self):
        t = self.t.split(";")[0].strip()
        self.rd, self.wr, self.srcc, self.srcab = set(), set(), set(), set()
        if self.wvm is not None or self.wlg is not None:
            self.kind, self.mn = "wait", "s_waitcnt"
            return
        if not t:
            self.kind, self.mn = "none", ""
            return
        if t.endswith(":"):
            self.kind, self.mn = "label", ""
            return
        if t.startswith("."):
            self.kind, self.mn = "none", ""
            return
        parts = t.split(None, 1)
        mn = self.mn = parts[0]
        ops = []
        if len(parts) > 1:
            body = re.sub(r"(op_sel\w*|quad_perm|neg_lo|neg_hi):\[[^\]]*\]", "", parts[1])
            ops = [o.strip() for o in body.split(",")]
        R = [regs(o) for o in ops]
        allr = set().union(*R) if R else set()
        if mn.startswith("v_mfma"):
            self.kind = "mfma"
            self.wr = R[0]
            self.srcab = R[1] | R[2]
            self.srcc = R[3]
            self.rd = self.srcab | self.srcc
        elif mn.startswith("v_"):
            self.kind = "trans" if mn.startswith(TRANS) else "valu"
            self.wr = set(R[0])
            self.rd = set().union(*R[1:]) if len(R) > 1 else set()
            if mn.startswith(("v_fmac", "v_permlane")) or "_dpp" in mn:
                self.rd |= R[0]
            if mn.startswith("v_permlane"):
                self.wr |= R[1]
            if mn.startswith(("v_add_co", "v_addc_co", "v_sub_co")):
                self.wr |= R[1]
        elif mn.startswith(("buffer_", "global_")):
            self.kind = "vmem"
            isload = "_load" in mn
            lds = bool(re.search(r"\blds\b", t))
            ret = "atomic" in mn and bool(re.search(r"\bsc0\b", t))
            if isload and not lds:
                self.wr = R[0]
                self.rd = set().union(*R[1:])
            else:
                self.rd = allr
                if ret:
                    self.wr = R[0]
            if lds:
                self.rd = self.rd | {"m0"}
                self.kind = "dma"
        elif mn.startswith("ds_"):
            self.kind = "ds"
            if mn.startswith(("ds_read", "ds_bpermute", "ds_swizzle")):
                self.wr = R[0]
                self.rd = set().union(*R[1:])
            else:
                self.rd = allr
        elif mn.startswith("s_"):
            if mn in ("s_waitcnt", "s_nop", "s_barrier", "s_sleep", "s_setprio", "s_endpgm"):
                self.kind = "misc"
            elif mn.startswith(("s_branch", "s_cbranch")):
                self.kind = "branch"
            elif mn.startswith(("s_load", "s_memtime", "s_memrealtime", "s_atomic")):
                self.kind = "smem"
                self.wr = R[0]
                self.rd = set().union(*R[1:]) if len(R) > 1 else set()
            elif mn.startswith("s_cmp"):
                self.kind = "salu"
                self.rd = allr
            else:
                self.kind = "salu"
                self.wr = R[0]
                self.rd = set().union(*R[1:]) if len(R) > 1 else set()
        else:
            raise ValueError("unknown instruction: " + t)

    def states(self):
        if self.kind in ("label", "none"):
            return 0
        if self.kind == "wait" and self.nvm is None and self.nlg is None:
            return 0
        if self.mn == "s_nop":
            return int(self.t.split()[1]) + 1
        return 1

    def isvec(self):
        return self.kind in ("valu", "trans", "vmem", "dma", "ds", "mfma")


def regs(o):
    o = o.strip()
    o = o.split()[0] if o else o
    o = o.lstrip("-").replace("abs(", "").replace(")", "").replace("|", "")
    m = re.fullmatch(r"([vas])\[(\d+):(\d+)\]", o)
    if m:
        return {f"{m.group(1)}{i}" for i in range(int(m.group(2)), int(m.group(3)) + 1)}
    m = re.fullmatch(r"([vas])(\d+)", o)
    if m:
        return {o}
    if o in ("vcc", "vcc_lo", "vcc_hi"):
        return {"vcc"}
    if o in ("exec", "exec_lo", "exec_hi"):
        return {"exec"}
    if o == "m0":
        return {"m0"}
    return set()


def v(a, n=1):
    return f"v{a}" if n == 1 else f"v[{a}:{a+n-1}]"


def a_(a, n=1):
    return f"a{a}" if n == 1 else f"a[{a}:{a+n-1}]"


def s(a, n=1):
    return f"s{a}" if n == 1 else f"s[{a}:{a+n-1}]"


class Seg(list):
    def e(self, text, tag=None, cond=False):
        for line in text.strip("\n").split("\n"):
            if line.strip():
                self.append(I(line.strip(), tag, cond))
        return self

    def wait(self, vm=None, lg=None):
        if isinstance(vm, str):
            vm = [vm]
        if isinstance(lg, str):
            lg = [lg]
        self.append(I("", wvm=vm, wlg=lg))
        return self


def W(vm=None, lg=None):
    if isinstance(vm, str):
        vm = [vm]
    if isinstance(lg, str):
        lg = [lg]
    return I("", wvm=vm, wlg=lg)


def resolve_waits(path):
    vm, lg = [], []
    vdone, ldone = 0, 0
    waited = set()
    for ins in path:
        if ins.kind == "wait":
            waited |= set(ins.wvm or []) | set(ins.wlg or [])
            for tg in (ins.wvm or []) + (ins.wlg or []):
                assert any(tg == h[0] for h in vm + lg), f"wait on tag {tg} that was never issued"
        elif ins.tag is not None:
            assert ins.tag not in waited, f"op with tag {ins.tag} issued after a wait on it"
        if ins.kind in ("vmem", "dma"):
            vm.append((ins.tag, ins.cond))
        elif ins.kind == "ds":
            lg.append((ins.tag, ins.cond))
        elif ins.kind == "misc" and ins.mn == "s_waitcnt" and not ins.cond:
            if "vmcnt(0)" in ins.t:
                vdone = len(vm)
            if "lgkmcnt(0)" in ins.t:
                ldone = len(lg)
        elif ins.kind == "wait":
            for tags, hist, which in ((ins.wvm, vm, "vm"), (ins.wlg, lg, "lg")):
                if not tags:
                    continue
                idx = max((k for k, (tg, _) in enumerate(hist) if tg in tags), default=None)
                done = vdone if which == "vm" else ldone
                if idx is None or idx < done:
                    continue
                n = sum(1 for (tg, c) in hist[idx + 1:] if not c)
                lim = 63 if which == "vm" else 15
                n = min(n, lim)
                if which == "vm":
                    ins.nvm = n if ins.nvm is None else min(ins.nvm, n)
                    vdone = max(vdone, idx + 1)
                else:
                    ins.nlg = n if ins.nlg is None else min(ins.nlg, n)
                    ldone = max(ldone, idx + 1)


def isv(r):
    return r[0] in "va" and r != "vcc"


def need_states(p, c):
    n = 0
    pv = p.kind in ("valu", "trans")
    cv = c.kind in ("valu", "trans")
    if pv:
        w = p.wr
        wv = {r for r in w if isv(r)}
        ws = w - wv
        if c.kind == "mfma" and wv & c.rd:
            n = max(n, 2)
        if cv and ("_dpp" in c.mn or c.mn.startswith("v_permlane")) and wv & c.rd:
            n = max(n, 2)
        if cv and c.mn.startswith(("v_readlane", "v_readfirstlane")) and wv & c.rd:
            n = max(n, 1)
        if p.kind == "trans" and c.kind == "valu" and wv & c.rd:
            n = max(n, 1)
        if cv and ws & c.rd:
            n = max(n, 2)
        if c.kind in ("vmem", "dma") and ws & c.rd:
            n = max(n, 5)
    if p.kind == "mfma":
        d = p.wr
        if c.kind == "mfma":
            if d & c.srcab:
                n = max(n, 8)
            if d & c.srcc and (d != c.srcc):
                n = max(n, 6)
            if d & c.wr and not (d & c.srcc):
                n = max(n, 8)
        elif cv:
            if d & (c.rd | c.wr):
                n = max(n, 8)
            if p.srcc & c.wr:
                n = max(n, 3)
        elif c.kind in ("vmem", "dma", "ds"):
            if d & (c.rd | c.wr):
                n = max(n, 8)
    if p.kind == "salu" and "m0" in p.wr and c.kind == "dma":
        n = max(n, 1)
    if p.kind == "vmem" and re.search(r"store_dwordx[34]", p.mn):
        data = regs(p.t.split(None, 1)[1].split(",")[0])
        if data & c.wr:
            n = max(n, 2 if cv else 1)
    return n


def pad_hazards(path):
    changed = False
    for k, c in enumerate(path):
        if c.kind in ("label", "none", "wait", "misc", "branch"):
            continue
        dist = c.pad
        j = k - 1
        while j >= 0 and dist < 8:
            p = path[j]
            req = need_states(p, c)
            if req > dist:
                c.pad += req - dist
                dist = req
                changed = True
            dist += p.states() + p.pad
            j -= 1
    return changed


def render(seg):
    out = []
    for ins in seg:
        if ins.pad:
            out.append(f"    s_nop {ins.pad - 1}")
        if ins.kind == "wait":
            p = []
            if ins.nvm is not None:
                p.append(f"vmcnt({ins.nvm})")
            if ins.nlg is not None:
                p.append(f"lgkmcnt({ins.nlg})")
            if p:
                out.append("    s_waitcnt " + " ".join(p))
        elif ins.kind == "label":
            out.append(ins.t)
        else:
            out.append("    " + ins.t)
    return "\n".join(out) + "\n"


def finalize(paths):
    for p in paths:
        resolve_waits([i for sg in p for i in sg])
    for p in paths:
        pad_hazards([i for sg in p for i in sg])


def cost(ins):
    if ins.kind == "trans":
        return 2
    if ins.kind in ("label", "none"):
        return 0
    return 1


class Gaps:
    def __init__(self, mfmas):
        self.m = mfmas
        self.g = [[] for _ in mfmas]

    def put(self, k, *ins):
        for x in ins:
            self.g[k].append(x if isinstance(x, I) else I(x))

    def load(self, k):
        vec = sum(cost(x) for x in self.g[k] if x.isvec())
        tot = sum(cost(x) for x in self.g[k])
        return vec, tot

    def fits(self, k, items):
        g = self.g[k] + items
        if any(x.kind in ("label", "branch") or x.mn == "s_barrier" for x in self.g[k]):
            return False
        vec = sum(cost(x) for x in g if x.isvec())
        tot = sum(cost(x) for x in g)
        cap = 3 if not g[0].isvec() else 2
        return vec <= 2 and tot <= cap

    def fill(self, stream, k0, k1, maxper=2):
        k = k0
        used = 0
        for x in stream:
            if isinstance(x, tuple):
                k = min(k + x[1], k1 - 1)
                used = 0
                continue
            items = x if isinstance(x, list) else [x]
            if len(items) > 1:
                cand = [j for j in range(k, min(k + 4, k1)) if not any(y.kind in ("label", "branch") or y.mn == "s_barrier" for y in self.g[j])]
                k = min(cand, key=lambda j: self.load(j)[1])
                self.g[k].extend(items)
                k = min(k + 1, k1 - 1)
                used = 0
                continue
            while k < k1 - 1 and not (self.fits(k, items) and used < maxper):
                k += 1
                used = 0
            self.g[k].extend(items)
            used += cost(x)
        return k

    def flat(self):
        sg = Seg()
        for m, g in zip(self.m, self.g):
            sg.append(m)
            sg.extend(g)
        return sg
```

```python
import sys, struct
from asmlib import *

NAME = "parallel_sum__linear_attn_block__dense_activation_silu__prompt_kernel"


def f2u(x):
    return struct.unpack("<I", struct.pack("<f", x))[0]


LOG2E = 1.4426950408889634
LN2 = 0.6931471805599453
HUGE = 0x40000000

WS_STATS = 0x0
WS_ZERO = 0x10000
WS_CROW = WS_ZERO
WS_CKV = WS_ZERO + 40 * 128
WS_CO = WS_ZERO + 72 * 128
WS_KV = WS_ZERO + 200 * 128
assert WS_KV + 8 * 7168 + 1024 <= WS_ZERO + 1024 * 128
WS_B2 = 0x30000
WS_A2 = WS_B2 + 8 * 74 * 5120
WS_PQ = WS_A2 + 32 * 74 * 4096
WS_END = WS_PQ + 32 * 20 * 4096
WS_PROF = 0x1000000

L_W = 0
L_X = 81920
L_RP = 155648
L_B2 = 0
L_KV = 143360
LDS_BYTES = 163840

sX, sW, sWS, sST, sDBG, sOUT, sRP = 8, 12, 16, 20, 24, 28, 32
sWAVE, sI, sROLE, sTILE, sPITCH, sSEG0, sSEGD = 36, 37, 38, 39, 40, 41, 42
sXOFF, sWOFF, sWSTEP, sMX, sMW = 43, 44, 45, 46, 47
sI2, sJ2, sT0, sT1, sT2, sT3, sT4, sT5 = 48, 49, 50, 51, 52, 53, 54, 55
sSPIN, sB2, sSO, sROW0, sASTR, sABASE = 56, 57, 58, 59, 60, 61
sC0 = 62
sC1 = 64
sRPO = 66
sU = 70
sUU = 75
sMSK = 72
sNCT = 73
sCTR = 74
sPROF = 76

vLANE, vT, vG, vL16, vL16B = 0, 1, 2, 3, 4
vTMP = 5
ACC = 8
WR = 128
XR = 148
vWD = 172
vXD = 177
vWRD = 183
vXRD = 187
vTOK = 189
SD = 192


def acc(rb, cb):
    return ACC + (cb * 3 + rb) * 4


def head(x):
    return x // 20


def mask_kv(db, eb):
    m = 0
    for l in range(64):
        if head(16 * db + 4 * (l >> 4)) == head(16 * eb + (l & 15)):
            m |= 1 << l
    return m


def mask_z(db):
    m = 0
    for l in range(64):
        if head(16 * db + 4 * (l >> 4)) == (l & 3):
            m |= 1 << l
    return m


KVBLK = [(db, eb) for eb in range(5) for db in range(5) if abs(db - eb) <= 1]


class Gen:
    def __init__(self, **o):
        self.o = dict(prof=False, spin=1 << 16)
        self.o.update(o)
        self.nstamp = 0
        self.stamps = []

    def stamp(self, sg, name):
        if not self.o["prof"]:
            return
        sets = {1: ("karg", "s0iss", "k0", "kend", "epi", "acked", "s1", "opiece", "k2end"),
                2: ("s1", "kvl", "opiece", "n4", "n7", "look0", "look1", "n14", "k2end"),
                3: ("k0", "st1", "st2", "st4", "st6", "st8", "st9", "kend", "cs")}
        if name not in ("rt0", "start", "end", "rt1") and name not in sets[self.o["prof"]]:
            return
        if name not in self.stamps:
            self.stamps.append(name)
        k = self.stamps.index(name)
        assert k < 13
        sg.e(f"s_memtime {s(sPROF + 2 * k, 2)}" if not name.startswith("rt") else f"s_memrealtime {s(sPROF + 2 * k, 2)}")

    def srd(self, sg, dst, lo, hi, size):
        sg.e(f"""
        s_mov_b32 {s(dst)}, {lo}
        s_mov_b32 {s(dst+1)}, {hi}
        s_mov_b32 {s(dst+2)}, {size}
        s_mov_b32 {s(dst+3)}, 0x20000
        """)

    def spin(self, sg, lab, load, cmp):
        sg.e(f"s_cbranch_vccz {lab}_ok")
        sg.e(f"s_mov_b32 {s(sSPIN)}, 0")
        sg.e(f"{lab}_again:")
        sg.e(load, cond=True)
        sg.e("s_waitcnt vmcnt(0)", cond=True)
        sg.e(cmp)
        sg.e(f"""
        s_add_u32 {s(sSPIN)}, {s(sSPIN)}, 1
        s_cmp_gt_u32 {s(sSPIN)}, {self.o['spin']}
        s_cbranch_scc1 {lab}_ok
        s_cbranch_vccnz {lab}_again
        {lab}_ok:
        """)

    def prologue(self):
        sg = Seg()
        R = SD
        self.stamp(sg, "rt0")
        self.stamp(sg, "start")
        sg.e(f"""
        s_cmp_ge_u32 s2, 256
        s_cbranch_scc1 L_exit
        s_load_dwordx4 s[4:7], s[0:1], 0
        s_load_dwordx8 s[64:71], s[0:1], 32
        s_load_dwordx2 s[50:51], s[0:1], 16
        s_load_dwordx2 s[52:53], s[0:1], 64
        v_lshrrev_b32 v1, 6, v0
        v_and_b32 v0, 63, v0
        v_readfirstlane_b32 {s(sWAVE)}, v1
        s_getpc_b64 s[54:55]
        L_pc:
        v_lshlrev_b32 v5, 7, v0
        s_lshr_b32 s3, s2, 3
        s_lshl_b32 s3, s3, 2
        s_add_u32 s3, s3, {s(sWAVE)}
        s_mul_i32 s3, s3, CODE_LINES*128
        v_add_u32 v6, s3, v5
        s_mov_b64 exec, CODE_MASK
        """)
        sg.e("global_load_dword v255, v6, s[54:55]")
        sg.e(f"""
        s_mov_b64 exec, -1
        s_lshl_b32 s3, s2, 2
        s_add_u32 {s(sUU)}, s3, {s(sWAVE)}
        s_lshl_b32 s3, {s(sUU)}, 1
        v_lshrrev_b32 v1, 5, v0
        v_add_u32 v1, s3, v1
        v_mul_u32_u24 v1, 1280, v1
        v_and_b32 v2, 31, v0
        v_lshl_add_u32 v3, v2, 4, v1
        v_lshl_add_u32 v4, v2, 3, v1
        s_mul_i32 s3, {s(sUU)}, {19*128}
        v_add_u32 v6, s3, v5
        v_min_u32 v6, {640*3840-128}, v6
        s_mul_i32 s3, {s(sUU)}, {17*128}
        v_add_u32 v7, s3, v5
        v_min_u32 v7, {640*3456-128}, v7
        s_waitcnt lgkmcnt(0)
        """)
        self.stamp(sg, "karg")
        sg.e(f"global_load_dwordx4 {v(R,4)}, v3, s[4:5]", tag="st")
        sg.e(f"global_load_dwordx4 {v(R+4,4)}, v3, s[4:5] offset:512", tag="st")
        sg.e(f"global_load_dwordx2 {v(R+8,2)}, v4, s[4:5] offset:1024", tag="st")
        if self.o.get("touch", 1):
            sg.e(f"s_mov_b64 exec, {hex((1<<19)-1)}")
            sg.e("global_load_dword v254, v6, s[6:7]", tag="tch")
            sg.e(f"s_mov_b64 exec, {hex((1<<17)-1)}")
            sg.e("global_load_dword v253, v7, s[64:65]", tag="tch")
            sg.e("s_mov_b64 exec, -1")
        sg.e(f"""
        v_and_b32 {v(vT)}, 15, v0
        v_lshrrev_b32 {v(vG)}, 4, v0
        v_lshlrev_b32 {v(vL16)}, 4, v0
        v_add_u32 {v(vL16B)}, 4096, {v(vL16)}
        """)
        return sg

    def decode(self):
        sg = Seg()
        sg.e(f"""
        s_and_b32 s3, s2, 7
        s_lshr_b32 {s(sJ2)}, s2, 3
        s_lshl_b32 {s(sI2)}, s3, 2
        s_lshl_b32 s3, s3, 5
        s_add_u32 s3, s3, {s(sJ2)}
        s_lshr_b32 {s(sI)}, {s(sJ2)}, 3
        s_add_u32 {s(sI2)}, {s(sI2)}, {s(sI)}
        s_and_b32 {s(sJ2)}, {s(sJ2)}, 7
        s_mul_i32 {s(sTILE)}, s3, 993
        s_lshr_b32 {s(sTILE)}, {s(sTILE)}, 16
        s_mul_i32 {s(sI)}, {s(sTILE)}, 66
        s_sub_u32 s3, s3, {s(sI)}
        s_cmp_lt_u32 {s(sTILE)}, 3
        s_cselect_b32 {s(sI)}, 43, 52
        s_cselect_b32 {s(sROLE)}, 6, 5
        s_mul_i32 {s(sI)}, {s(sI)}, s3
        s_lshr_b32 {s(sI)}, {s(sI)}, 8
        s_mul_i32 {s(sROLE)}, {s(sROLE)}, {s(sI)}
        s_sub_u32 s3, s3, {s(sROLE)}
        s_cmp_eq_u32 {s(sI)}, 11
        s_cselect_b32 s3, 3, s3
        s_mul_i32 {s(sROW0)}, {s(sI)}, 188
        s_cmp_lt_u32 s3, 2
        s_cbranch_scc1 L_dec_kv
        s_cmp_eq_u32 s3, 2
        s_cbranch_scc1 L_dec_q
        s_mul_i32 {s(sTILE)}, {s(sTILE)}, 3
        s_add_u32 {s(sTILE)}, {s(sTILE)}, s3
        s_sub_u32 {s(sTILE)}, {s(sTILE)}, 3
        s_mov_b32 {s(sROLE)}, 2
        s_mul_i32 {s(sSEG0)}, {s(sTILE)}, 320
        s_mov_b32 {s(sSEGD)}, 0
        s_mov_b32 {s(sPITCH)}, 3456
        s_branch L_dec_done
        L_dec_q:
        s_mov_b32 {s(sROLE)}, 1
        s_mul_i32 {s(sSEG0)}, {s(sTILE)}, 320
        s_mov_b32 {s(sSEGD)}, 0
        s_mov_b32 {s(sPITCH)}, 3840
        s_branch L_dec_done
        L_dec_kv:
        s_lshl_b32 {s(sTILE)}, {s(sTILE)}, 1
        s_add_u32 {s(sTILE)}, {s(sTILE)}, s3
        s_mov_b32 {s(sROLE)}, 0
        s_mul_i32 {s(sSEG0)}, {s(sTILE)}, 160
        s_add_u32 {s(sSEG0)}, {s(sSEG0)}, 1280
        s_mov_b32 {s(sSEGD)}, 1120
        s_mov_b32 {s(sPITCH)}, 3840
        L_dec_done:
        s_lshl_b32 {s(sWSTEP)}, {s(sPITCH)}, 6
        s_mul_i32 {s(sMX)}, {s(sWAVE)}, 18432
        s_add_u32 {s(sMX)}, {s(sMX)}, {L_X}
        s_mul_i32 {s(sMW)}, {s(sWAVE)}, 5120
        """)
        sg.e(f"""
        s_mul_i32 s3, {s(sWAVE)}, 48
        s_add_u32 s3, s3, {s(sROW0)}
        v_lshrrev_b32 v5, 3, v0
        v_and_b32 v6, 7, v0
        v_lshrrev_b32 v7, 1, v5
        v_xor_b32 v6, v6, v7
        v_lshlrev_b32 v6, 4, v6
        v_add_u32 v7, s3, v5
        v_mul_u32_u24 v7, 1280, v7
        v_add_u32 {v(vXD)}, v7, v6
        v_xor_b32 {v(vXD+1)}, 64, {v(vXD)}
        v_add_u32 {v(vXD+1)}, {8*1280}, {v(vXD+1)}
        v_add_u32 {v(vXD+2)}, {16*1280}, {v(vXD)}
        v_add_u32 {v(vXD+3)}, {16*1280}, {v(vXD+1)}
        v_add_u32 {v(vXD+4)}, {32*1280}, {v(vXD)}
        v_add_u32 {v(vXD+5)}, {32*1280}, {v(vXD+1)}
        s_cmp_eq_u32 {s(sWAVE)}, 3
        s_cselect_b32 {s(sMSK)}, 0, -1
        """)
        sg.e(f"s_lshl_b32 s3, {s(sWAVE)}, 4")
        for m in range(5):
            sg.e(f"""
            v_add_u32 v5, {64*m}, v0
            v_mul_u32_u24 v6, 3277, v5
            v_lshrrev_b32 v6, 16, v6
            v_mul_u32_u24 v7, 20, v6
            v_sub_u32 v5, v5, v7
            v_lshrrev_b32 v7, 2, v6
            v_and_b32 v7, 2, v7
            v_xor_b32 v5, v5, v7
            v_cmp_lt_u32 vcc, 9, v5
            v_mov_b32 v7, {s(sSEGD)}
            v_lshlrev_b32 v5, 4, v5
            v_cndmask_b32 v7, 0, v7, vcc
            v_add3_u32 v5, v5, v7, {s(sSEG0)}
            v_cmp_le_u32 vcc, {s(sPITCH)}, v5
            v_add_u32 v6, s3, v6
            v_mad_u32_u24 v5, v6, {s(sPITCH)}, v5
            v_or_b32 v6, {hex(HUGE)}, v5
            v_cndmask_b32 {v(vWD+m)}, v5, v6, vcc
            """)
        self.srd(sg, sX, "s4", "s5", 2048 * 1280)
        sg.e(f"""
        s_cmp_eq_u32 {s(sROLE)}, 2
        s_cselect_b32 {s(sW)}, s64, s6
        s_cselect_b32 {s(sW+1)}, s65, s7
        s_mul_i32 {s(sW+2)}, {s(sPITCH)}, 640
        s_mov_b32 {s(sW+3)}, 0x20000
        s_mov_b32 {s(sXOFF)}, 0
        s_mov_b32 {s(sWOFF)}, 0
        """)
        return sg

    def dma_x(self, st, m):
        r = [I(f"s_add_u32 m0, {s(sMX)}, {(st % 3) * 6144 + m * 1024}")]
        ld = I(f"buffer_load_dwordx4 {v(vXD+m)}, {s(sX,4)}, {s(sXOFF)} offen lds", tag=f"S{st}")
        if m == 5:
            r.append([I(f"s_mov_b32 exec_hi, {s(sMSK)}"), ld, I("s_mov_b32 exec_hi, -1")])
        else:
            r.append([ld])
        return r

    def dma_w(self, st, m):
        return [I(f"s_add_u32 m0, {s(sMW)}, {L_W + (st % 4) * 20480 + m * 1024}"),
                [I(f"buffer_load_dwordx4 {v(vWD+m)}, {s(sW,4)}, {s(sWOFF)} offen lds", tag=f"S{st}")]]

    def dma_sched(self):
        lead = self.o.get("lead", 120)
        out = []
        for st in range(10):
            for j in range(11):
                m = j >> 1
                a, b = self.dma_w(st, m) if j & 1 else self.dma_x(st, m)
                post = []
                if j == 9:
                    post = [I(f"s_add_u32 {s(sWOFF)}, {s(sWOFF)}, {s(sWSTEP)}")]
                if j == 10:
                    post = [I(f"s_add_u32 {s(sXOFF)}, {s(sXOFF)}, 128")]
                k = 60 * st - lead + (60 * j) // 11
                k = k - k % 3 + 2
                out.append((k, a, b, post))
        return out

    def side_setup_loads(self):
        sg = Seg()
        self.srd(sg, sWS, "s52", "s53", WS_END if not self.o["prof"] else WS_PROF + 0x100000)
        self.srd(sg, sST, "s52", "s53", 1024 * 64)
        self.srd(sg, sOUT, "s68", "s69", 2048 * 1280)
        self.srd(sg, sDBG, "s70", "s71", 256)
        R = SD
        sg.e(f"""
        s_mul_i32 {s(sU)}, s2, 3
        s_add_u32 {s(sU)}, {s(sU)}, {s(sWAVE)}
        s_cmp_eq_u32 {s(sWAVE)}, 3
        s_cselect_b32 {s(sU)}, 1000, {s(sU)}
        s_mul_i32 {s(sT4)}, {s(sU)}, 6554
        s_lshr_b32 {s(sT4)}, {s(sT4)}, 16
        s_mul_i32 s3, {s(sT4)}, 10
        s_sub_u32 {s(sT5)}, {s(sU)}, s3
        s_cmp_lt_u32 {s(sT4)}, 54
        s_cselect_b32 {s(sRP)}, s66, s50
        s_cselect_b32 {s(sRP+1)}, s67, s51
        s_cselect_b32 {s(sRP+2)}, 27, 10
        s_mul_i32 {s(sRP+2)}, {s(sRP+2)}, {64*1280}
        s_mov_b32 {s(sRP+3)}, 0x20000
        s_lshl_b32 {s(sT0)}, {s(sT4)}, 5
        s_add_u32 {s(sT1)}, {s(sT0)}, 16
        s_cmp_lt_u32 {s(sT4)}, 54
        s_cbranch_scc1 L_rp_ffn
        s_sub_u32 s3, {s(sT4)}, 54
        s_mul_i32 {s(sT2)}, s3, 52
        s_lshr_b32 {s(sT2)}, {s(sT2)}, 8
        s_mul_i32 {s(sT3)}, {s(sT2)}, 5
        s_sub_u32 s3, s3, {s(sT3)}
        s_mul_i32 {s(sT2)}, {s(sT2)}, 160
        s_lshr_b32 {s(sT0)}, s3, 1
        s_mul_i32 {s(sT0)}, {s(sT0)}, 80
        s_and_b32 {s(sT1)}, s3, 1
        s_lshl_b32 {s(sT1)}, {s(sT1)}, 5
        s_add_u32 {s(sT0)}, {s(sT0)}, {s(sT1)}
        s_add_u32 {s(sT1)}, {s(sT0)}, 16
        s_cmp_eq_u32 s3, 4
        s_cselect_b32 {s(sT0)}, 64, {s(sT0)}
        s_cselect_b32 {s(sT1)}, 144, {s(sT1)}
        s_add_u32 {s(sT0)}, {s(sT0)}, {s(sT2)}
        s_add_u32 {s(sT1)}, {s(sT1)}, {s(sT2)}
        L_rp_ffn:
        s_mul_i32 {s(sT0)}, {s(sT0)}, 1280
        s_mul_i32 {s(sT1)}, {s(sT1)}, 1280
        s_lshl_b32 s3, {s(sT5)}, 7
        s_cmp_lt_u32 {s(sU)}, 740
        s_cselect_b32 s3, s3, {hex(HUGE)}
        s_cselect_b32 {s(sT0)}, {s(sT0)}, 0
        s_cselect_b32 {s(sT1)}, {s(sT1)}, 0
        s_cselect_b32 {s(sT3)}, 0, {hex(HUGE)}
        v_lshrrev_b32 v5, 3, v0
        v_and_b32 v6, 7, v0
        v_mul_u32_u24 v5, 1280, v5
        v_lshl_add_u32 v5, v6, 4, v5
        v_add_u32 v5, s3, v5
        v_add_u32 v6, {8*1280}, v5
        v_or_b32 {v(R+11)}, {s(sT3)}, {v(vL16)}
        """)
        P = SD + 32
        nt = " nt" if self.o.get("rpnt", 1) else ""
        sg.e(f"buffer_load_dwordx4 {v(P,4)}, v5, {s(sRP,4)}, {s(sT0)} offen{nt}", tag="rp")
        sg.e(f"buffer_load_dwordx4 {v(P+4,4)}, v6, {s(sRP,4)}, {s(sT0)} offen{nt}", tag="rp")
        sg.e(f"buffer_load_dwordx4 {v(P+8,4)}, v5, {s(sRP,4)}, {s(sT1)} offen{nt}", tag="rp")
        sg.e(f"buffer_load_dwordx4 {v(P+12,4)}, v6, {s(sRP,4)}, {s(sT1)} offen{nt}", tag="rp")
        sg.e(f"s_min_u32 {s(sT4)}, {s(sT4)}, 73")
        for c in range(4):
            sg.e(f"""
            s_lshl_b32 s3, {s(sT5)}, 2
            s_add_u32 s3, s3, {c}
            s_mul_i32 {s(sT0+2)}, s3, 52
            s_lshr_b32 {s(sT0+2)}, {s(sT0+2)}, 8
            s_mul_i32 {s(sT0+3)}, {s(sT0+2)}, {74*5-5}
            s_add_u32 s3, s3, {s(sT0+3)}
            s_mul_i32 {s(sT0+3)}, {s(sT4)}, 5
            s_add_u32 s3, s3, {s(sT0+3)}
            s_lshl_b32 s3, s3, 10
            s_add_u32 {s(sRPO+c)}, s3, {WS_B2}
            """)
        return sg

    def lds_read_setup(self):
        sg = Seg()
        sg.e(f"""
        v_lshrrev_b32 v5, 2, {v(vT)}
        v_lshl_add_u32 v5, {v(vG)}, 3, v5
        v_mul_u32_u24 v5, 320, v5
        v_and_b32 v6, 3, {v(vT)}
        v_lshl_add_u32 v5, v6, 3, v5
        v_and_b32 v6, 1, {v(vG)}
        v_lshlrev_b32 v6, 5, v6
        v_add_u32 {v(vWRD)}, v5, v6
        v_sub_u32 {v(vWRD+1)}, v5, v6
        v_add_u32 {v(vWRD+2)}, 40960, {v(vWRD)}
        v_add_u32 {v(vWRD+3)}, 40960, {v(vWRD+1)}
        v_lshrrev_b32 v5, 1, {v(vT)}
        v_xor_b32 v5, v5, {v(vG)}
        v_lshlrev_b32 v5, 4, v5
        v_lshl_add_u32 v5, {v(vT)}, 7, v5
        v_add_u32 {v(vXRD)}, {s(sMX)}, v5
        v_xor_b32 {v(vXRD+1)}, 64, {v(vXRD)}
        v_add_u32 v5, {s(sMX)}, {v(vL16)}
        v_mov_b32 {v(WR)}, 0x3f803f80
        v_mov_b32 {v(WR+1)}, 0x3f803f80
        v_mov_b32 {v(WR+2)}, 0x3f803f80
        v_mov_b32 {v(WR+3)}, 0x3f803f80
        ds_write_b128 v5, {v(WR,4)} offset:{40*128}
        ds_write_b128 v5, {v(WR,4)} offset:{40*128+6144}
        ds_write_b128 v5, {v(WR,4)} offset:{40*128+12288}
        v_lshlrev_b32 v5, 2, {v(vG)}
        s_cmp_eq_u32 {s(sROLE)}, 0
        s_cselect_b64 vcc, -1, 0
        s_mul_i32 s3, {s(sWAVE)}, 48
        v_cndmask_b32 v5, {v(vT)}, v5, vcc
        v_add_u32 v5, s3, v5
        v_add_u32 {v(vTOK)}, {s(sROW0)}, v5
        v_add_u32 {v(vTOK+1)}, 16, {v(vTOK)}
        v_add_u32 {v(vTOK+2)}, 32, {v(vTOK)}
        v_mov_b32 v6, 4096
        v_cmp_lt_u32 vcc, {187-32}, v5
        v_cndmask_b32 {v(vTOK+2)}, {v(vTOK+2)}, v6, vcc
        s_waitcnt lgkmcnt(0)
        s_mul_i32 {s(sB2)}, {s(sJ2)}, 74
        s_add_u32 {s(sB2)}, {s(sB2)}, {s(sWAVE)}
        s_mul_i32 {s(sB2)}, {s(sB2)}, 5120
        s_add_u32 {s(sB2)}, {s(sB2)}, {WS_B2}
        """)
        return sg

    def allreduce32(self, st, r, tmp):
        for c in ("quad_perm:[1,0,3,2]", "quad_perm:[2,3,0,1]", "row_half_mirror", "row_mirror"):
            st.append(I(f"v_add_f32_dpp {v(r)}, {v(r)}, {v(r)} {c} row_mask:0xf bank_mask:0xf"))
        st.append(I(f"v_mov_b32 {v(tmp)}, {v(r)}"))
        st.append(I(f"v_permlane16_swap_b32 {v(r)}, {v(tmp)}"))
        st.append(I(f"v_add_f32 {v(r)}, {v(r)}, {v(tmp)}"))

    def side_work(self):
        st = []
        R, U = SD, SD + 12
        P, Q = SD + 32, SD + 48
        st += [I(f"s_lshl_b32 {s(sT0)}, {s(sUU)}, 7"), I(f"s_add_u32 {s(sT0)}, {s(sT0)}, {WS_ZERO}"), I(f"s_lshl_b32 {s(sT1)}, {s(sUU)}, 6")]
        for k in range(4):
            st.append(I(f"v_mov_b32 {v(Q+k)}, 0"))
        st.append([I("s_mov_b64 exec, 0xff"),
                   I(f"buffer_store_dwordx4 {v(Q,4)}, {v(vL16)}, {s(sWS,4)}, {s(sT0)} offen sc1", tag="sidest"),
                   I("s_mov_b64 exec, -1")])
        st += [I(f"s_lshl_b32 {s(sT2)}, {s(sWAVE)}, 11"), I(f"s_add_u32 {s(sT2)}, {s(sT2)}, {L_RP}"),
               I(f"v_add_u32 {v(U)}, {s(sT2)}, {v(vL16)}"),
               I(f"v_lshrrev_b32 {v(U+1)}, 2, v0"),
               I(f"v_lshlrev_b32 {v(U+1)}, 7, {v(U+1)}"),
               I(f"v_and_b32 {v(U+2)}, 3, v0"),
               I(f"v_lshl_add_u32 {v(U+1)}, {v(U+2)}, 3, {v(U+1)}"),
               I(f"v_add_u32 {v(U+1)}, {s(sT2)}, {v(U+1)}")]
        st.append(W(vm="rp"))
        for hh in range(2):
            st.append(I(f"ds_write_b128 {v(U)}, {v(P+8*hh,4)}"))
            st.append(I(f"ds_write_b128 {v(U)}, {v(P+8*hh+4,4)} offset:1024"))
            for c in range(4):
                st.append(I(f"ds_read_b64_tr_b16 {v(Q+4*c+2*hh,2)}, {v(U+1)} offset:{32*c}", tag=f"rpr"))
        st.append(("skip", 8))
        st.append(W(lg="rpr"))
        for c in range(4):
            st.append(I(f"buffer_store_dwordx4 {v(Q+4*c,4)}, {v(R+11)}, {s(sWS,4)}, {s(sRPO+c)} offen sc1", tag="sidest"))
            st.append(("skip", 2))
        st.append(W(vm="st"))
        for k in range(10):
            st.append(I(f"v_lshlrev_b32 {v(U+2*k)}, 16, {v(R+k)}"))
            st.append(I(f"v_and_b32 {v(U+2*k+1)}, 0xffff0000, {v(R+k)}"))
        st.append(I(f"v_add_f32 {v(R)}, {v(U)}, {v(U+1)}"))
        st.append(I(f"v_add_f32 {v(R+1)}, {v(U+2)}, {v(U+3)}"))
        for k in range(4, 20):
            st.append(I(f"v_add_f32 {v(R+(k&1))}, {v(R+(k&1))}, {v(U+k)}"))
        st.append(I(f"v_add_f32 {v(R)}, {v(R)}, {v(R+1)}"))
        self.allreduce32(st, R, R + 1)
        st.append(I(f"v_mul_f32 {v(R)}, {hex(f2u(1.0/640))}, {v(R)}"))
        for k in range(20):
            st.append(I(f"v_sub_f32 {v(U+k)}, {v(U+k)}, {v(R)}"))
        st.append(I(f"v_mul_f32 {v(R+1)}, {v(U)}, {v(U)}"))
        st.append(I(f"v_mul_f32 {v(R+2)}, {v(U+1)}, {v(U+1)}"))
        for k in range(2, 20):
            st.append(I(f"v_fmac_f32 {v(R+1+(k&1))}, {v(U+k)}, {v(U+k)}"))
        st.append(I(f"v_add_f32 {v(R+1)}, {v(R+1)}, {v(R+2)}"))
        self.allreduce32(st, R + 1, R + 2)
        st.append(I(f"v_mov_b32 {v(R+2)}, {hex(f2u(1e-5))}"))
        st.append(I(f"v_fmac_f32 {v(R+2)}, {hex(f2u(1.0/640))}, {v(R+1)}"))
        st.append(I(f"v_rsq_f32 {v(R+1)}, {v(R+2)}"))
        st.append(I(f"v_mov_b32 {v(R+2)}, {v(R)}"))
        st.append(I(f"v_mov_b32 {v(R+3)}, {v(R+1)}"))
        st.append(I(f"v_permlane32_swap_b32 {v(R)}, {v(R+2)}"))
        st.append(I(f"v_permlane32_swap_b32 {v(R+1)}, {v(R+3)}"))
        st.append([I("s_mov_b64 exec, 15"),
                   I(f"buffer_store_dwordx4 {v(R,4)}, {v(vL16)}, {s(sST,4)}, {s(sT1)} offen sc1", tag="sidest"),
                   I("s_mov_b64 exec, -1")])
        return st

    def rd_w(self, G):
        n, cb = divmod(G, 10)
        st, kk = n >> 1, n & 1
        slot = st % 4
        base = vWRD + (slot >> 1) * 2 + (cb & 1)
        r = WR + (G % 5) * 4
        out = []
        for hh in range(2):
            off = L_W + (slot & 1) * 20480 + (32 * kk + 4 * hh) * 320 + 32 * cb
            out.append(I(f"ds_read_b64_tr_b16 {v(r+2*hh,2)}, {v(base)} offset:{off}", tag=f"w{G}"))
        return out

    def rd_x(self, n, rb):
        st, kk = n >> 1, n & 1
        return I(f"ds_read_b128 {v(XR+12*kk+4*rb,4)}, {v(vXRD+kk)} offset:{(st%3)*6144+rb*2048}", tag=f"x{n}")

    def b2_agpr_loads(self):
        st = []
        for q in range(12):
            if q < 7:
                st.append(I(f"s_add_u32 {s(sSO)}, {s(sB2)}, {q*20480}"))
            else:
                st.append(I(f"s_mul_i32 {s(sSO)}, {s(sWAVE)}, {4*5120}"))
                st.append(I(f"s_add_u32 {s(sSO)}, {s(sSO)}, {s(sB2)}"))
                st.append(I(f"s_add_u32 {s(sSO)}, {s(sSO)}, {(54+q-7)*5120}"))
            for cb in range(5):
                vo, off = (vL16, cb * 1024) if cb < 4 else (vL16B, 0)
                st.append(I(f"buffer_load_dwordx4 {a_(20*q+4*cb,4)}, {v(vo)}, {s(sWS,4)}, {s(sSO)} offen offset:{off} sc1", tag=f"b2_{q}"))
        return st

    def kloop(self, kv):
        lab = "kv" if kv else "hq"
        pre = Seg()
        pre.wait(vm="S0")
        pre.e("s_barrier")
        self.stamp(pre, "k0")
        for rb in range(3):
            pre.append(self.rd_x(0, rb))
        for G in range(4):
            pre.extend(self.rd_w(G))
        pre.wait(lg=["x0", "w0"])
        mf = []
        for n in range(20):
            for cb in range(10):
                for rb in range(3):
                    G = 10 * n + cb
                    wf, xf = v(WR + (G % 5) * 4, 4), v(XR + 12 * (n & 1) + 4 * rb, 4)
                    A, B = (xf, wf) if kv else (wf, xf)
                    c = v(acc(rb, cb), 4)
                    mf.append(I(f"v_mfma_f32_16x16x32_bf16 {c}, {A}, {B}, {c if n else 0}"))
        gp = Gaps(mf)
        arrive_stage = self.o.get("arrive_stage", 4 if self.o.get("side_in_loop", 1) else 2)
        for n in range(20):
            st, kk = n >> 1, n & 1
            for cb in range(10):
                G = 10 * n + cb
                k = 3 * G
                if kk == 1 and cb == 6 and st < 9:
                    tags = [f"S{st+1}"]
                    if st + 1 == arrive_stage:
                        tags.append("sidest")
                    gp.put(k, W(vm=tags), I("s_barrier"))
                if G + 1 < 200:
                    tags = [f"w{G+1}"] + ([f"x{n+1}"] if cb == 9 else [])
                    gp.put(k + 2, W(lg=tags))
                if G + 4 < 200:
                    a, b = self.rd_w(G + 4)
                    gp.put(k, a)
                    gp.put(k + 1, b)
            if n < 19:
                for rb in range(3):
                    gp.put(30 * n + 19 + 2 * rb, self.rd_x(n + 1, rb))
        for k, a, b, post in self.dma_sched():
            if k < 2:
                continue
            gp.g[k - 1].insert(0, a)
            gp.put(k, *b)
            for x in post:
                gp.g[k + 2].insert(0, x)
        for nn in (1, 2, 4, 6, 8, 9):
            tmp = Seg()
            self.stamp(tmp, f"st{nn}")
            gp.put(60 * nn, *tmp)
        if self.o.get("side_in_loop", 1):
            last = gp.fill(self.side_work(), 1, 60 * arrive_stage - 30)
            self.side_last = last
        k = 60 * arrive_stage + 3
        gp.g[k].insert(0, I(f"s_cmp_lg_u32 {s(sWAVE)}, 0"))
        gp.put(k, I(f"s_cbranch_scc1 L_noarr_{lab}"),
               I("s_and_b32 s3, s2, 63"), I("s_lshl_b32 s3, s3, 2"), I("v_mov_b32 v5, 1"), I("v_mov_b32 v6, 0"),
               I("s_mov_b64 exec, 1"),
               I(f"buffer_atomic_add v5, v6, {s(sDBG,4)}, s3 offen sc1", cond=True),
               I("s_mov_b64 exec, -1"), I(f"L_noarr_{lab}:"))
        kc = self.o.get("check_k", 60 * 6 + 30)
        kl = self.o.get("look_k", 60 * 7 + 51)
        ld = f"buffer_load_dword v5, v6, {s(sDBG,4)}, 0 offen sc1"
        gp.put(kc - 3, I("v_lshlrev_b32 v6, 2, v0"))
        gp.put(kc, I(ld, tag="chk"))
        tmp = Seg()
        tmp.wait(vm="chk")
        tmp.e("v_cmp_ne_u32 vcc, 4, v5")
        self.spin(tmp, f"L_chk_{lab}", ld, "v_cmp_ne_u32 vcc, 4, v5")
        gp.put(kl, *tmp)
        stl = []
        for rb in range(3):
            if kv:
                stl.append(I(f"v_lshlrev_b32 {v(5+rb)}, 5, {v(vTOK+rb)}"))
                stl.append(I(f"buffer_load_dwordx4 {v(SD+8*rb,4)}, {v(5+rb)}, {s(sST,4)}, 0 offen sc1", tag="stat"))
                stl.append(I(f"buffer_load_dwordx4 {v(SD+8*rb+4,4)}, {v(5+rb)}, {s(sST,4)}, 0 offen offset:64 sc1", tag="stat"))
            else:
                stl.append(I(f"v_and_b32 {v(SD+6)}, 1, {v(vTOK+rb)}"))
                stl.append(I(f"v_mul_u32_u24 {v(SD+6)}, 24, {v(SD+6)}"))
                stl.append(I(f"v_lshlrev_b32 {v(5+rb)}, 5, {v(vTOK+rb)}"))
                stl.append(I(f"v_sub_u32 {v(5+rb)}, {v(5+rb)}, {v(SD+6)}"))
                stl.append(I(f"buffer_load_dwordx2 {v(SD+2*rb,2)}, {v(5+rb)}, {s(sST,4)}, 0 offen sc1", tag="stat"))
        kk = gp.fill(stl, kl + 1, 600, maxper=1)
        b2 = self.b2_agpr_loads()
        k = max(kk + 2, 600 - self.o.get("lead", 120) + 3)
        while k < 599:
            pos = 0
            while not b2[0].isvec():
                gp.g[k - 1].insert(pos, b2.pop(0))
                pos += 1
            gp.put(k, b2.pop(0))
            k += self.o.get("b2_step", 5)
        self.b2_rest = [x.t for x in b2], [x.tag for x in b2]
        sg = pre
        sg.extend(gp.flat())
        self.stamp(sg, "kend")
        return sg

    def b2_stream(self):
        return [I(t, tag=g) for t, g in zip(*self.b2_rest)]

    @staticmethod
    def pop_b2(sg, b2, n):
        for _ in range(n):
            while b2 and not b2[0].isvec():
                sg.append(b2.pop(0))
            if b2:
                sg.append(b2.pop(0))

    def epi_hq(self, q):
        sg = Seg()
        b2 = self.b2_stream()
        per = self.o.get("b2_per", 2)
        T, E, O, AD, CS = WR, WR + 8, WR + 16, SD + 8, SD + 16
        lab = "q" if q else "h"
        sg.e(f"""
        v_lshlrev_b32 v7, 4, {v(vG)}
        v_add_u32 v7, {L_RP}, v7
        s_cmp_lg_u32 {s(sWAVE)}, 3
        s_cbranch_scc1 L_nocs_{lab}
        s_mov_b32 exec_lo, 0x80008000
        s_mov_b32 exec_hi, 0x80008000
        """)
        for cb in range(10):
            sg.e(f"ds_write_b128 v7, {v(acc(2,cb),4)} offset:{64*cb}", cond=True)
        sg.e(f"""
        s_mov_b64 exec, -1
        s_waitcnt lgkmcnt(0)
        L_nocs_{lab}:
        s_barrier
        """)
        self.stamp(sg, "cs")
        pairs = [(0, 1), (2, 3), (5, 6), (7, 8), (4, 9)] if q else [(0, 1), (2, 3), (4, 5), (6, 7), (8, 9)]
        for c, pr in enumerate(pairs):
            for hb, cb in enumerate(pr):
                sg.e(f"ds_read_b128 {v(CS+8*c+4*hb,4)}, v7 offset:{64*cb}", tag=f"cs{c}")
        stride, base = (20 * 4096, WS_PQ) if q else (74 * 4096, WS_A2)
        sg.e(f"s_mul_i32 {s(sT0)}, {s(sTILE)}, {5*4096}")
        sg.e(f"s_add_u32 {s(sT0)}, {s(sT0)}, {base}")
        for rb in range(3):
            sg.e(f"""
            v_lshrrev_b32 v5, 6, {v(vTOK+rb)}
            v_mul_u32_u24 v5, {stride}, v5
            v_bfe_u32 v6, {v(vTOK+rb)}, 4, 2
            v_lshl_add_u32 v5, v6, 10, v5
            v_lshl_add_u32 v5, {v(vG)}, 8, v5
            v_and_b32 v6, 15, {v(vTOK+rb)}
            v_lshl_add_u32 v5, v6, 4, v5
            v_or_b32 v6, {hex(HUGE)}, v5
            v_cmp_lt_u32 vcc, 2047, {v(vTOK+rb)}
            v_cndmask_b32 {v(AD+rb)}, v5, v6, vcc
            """)
        sg.e(f"""
        s_mov_b32 {s(sC0)}, {hex(f2u(LN2))}
        s_mov_b32 {s(sC0+1)}, {hex(f2u(1e-6))}
        """)
        sg.wait(vm="stat")
        for rb in range(3):
            sg.e(f"v_mul_f32 {v(SD+2*rb+1)}, {hex(f2u(LOG2E if q else -LOG2E))}, {v(SD+2*rb+1)}")
        u = 0
        for c, pr in enumerate(pairs):
            last = (c == 4 and not q)
            if last:
                sg.e(f"s_cmp_eq_u32 {s(sTILE)}, 10")
                sg.e("s_cbranch_scc1 L_h_skip")
            sg.wait(lg=f"cs{c}")
            for rb in range(3):
                ms = v(SD + 2 * rb, 2)
                src = [acc(rb, pr[0]), acc(rb, pr[0]) + 2, acc(rb, pr[1]), acc(rb, pr[1]) + 2]
                for j in range(4):
                    sg.e(f"v_pk_fma_f32 {v(T+2*j,2)}, {v(CS+8*c+2*j,2)}, {ms}, {v(src[j],2)} op_sel_hi:[1,0,1] neg_lo:[0,1,0] neg_hi:[0,1,0]")
                for j in range(4):
                    sg.e(f"v_pk_mul_f32 {v(T+2*j,2)}, {v(T+2*j,2)}, {ms} op_sel:[0,1] op_sel_hi:[1,1]")
                o = O + 4 * (u & 1)
                if not q:
                    for j in range(8):
                        sg.e(f"v_exp_f32 {v(E+j)}, {v(T+j)}")
                    for j in range(4):
                        sg.e(f"v_pk_add_f32 {v(E+2*j,2)}, {v(E+2*j,2)}, 1.0 op_sel_hi:[1,0]")
                    for j in range(8):
                        sg.e(f"v_rcp_f32 {v(E+j)}, {v(E+j)}")
                    for j in range(4):
                        sg.e(f"v_pk_mul_f32 {v(T+2*j,2)}, {v(T+2*j,2)}, {v(E+2*j,2)}")
                else:
                    for j in range(8):
                        sg.e(f"v_exp_f32 {v(E+j)}, {v(T+j)} clamp")
                    for j in range(4):
                        sg.e(f"v_pk_fma_f32 {v(T+2*j,2)}, {v(T+2*j,2)}, {s(sC0,2)}, 1.0 op_sel_hi:[1,0,0]")
                    for j in range(8):
                        sg.e(f"v_max_f32 {v(T+j)}, {v(T+j)}, {v(E+j)}")
                    for j in range(4):
                        sg.e(f"v_pk_add_f32 {v(T+2*j,2)}, {v(T+2*j,2)}, {s(sC0,2)} op_sel:[0,1] op_sel_hi:[1,1]")
                for j in range(4):
                    sg.e(f"v_cvt_pk_bf16_f32 {v(o+j)}, {v(T+2*j)}, {v(T+2*j+1)}")
                sg.e(f"buffer_store_dwordx4 {v(o,4)}, {v(AD+rb)}, {s(sWS,4)}, {s(sT0)} offen sc1", tag="pub", cond=last)
                u += 1
                if c < 4:
                    self.pop_b2(sg, b2, per)
            if last:
                sg.e("L_h_skip:")
            else:
                sg.e(f"s_add_u32 {s(sT0)}, {s(sT0)}, 4096")
        self.stamp(sg, "epi")
        self.pop_b2(sg, b2, 100)
        sg.e(f"""
        s_lshr_b32 {s(sCTR)}, {s(sROW0)}, 6
        s_add_u32 {s(sNCT)}, {s(sROW0)}, 187
        s_lshr_b32 {s(sNCT)}, {s(sNCT)}, 6
        s_sub_u32 {s(sNCT)}, {s(sNCT)}, {s(sCTR)}
        s_lshl_b32 {s(sCTR)}, {s(sCTR)}, 7
        s_add_u32 {s(sCTR)}, {s(sCTR)}, {WS_CROW}
        """)
        return sg

    def epi_kv(self):
        sg = Seg()
        b2 = self.b2_stream()
        NM, RS = SD + 24, SD + 36
        CS = SD + 48
        VAL = SD + 58
        PK = WR
        T, E = SD, SD + 12
        sg.e(f"""
        v_lshlrev_b32 v7, 2, {v(vT)}
        v_add_u32 v7, {L_RP}, v7
        s_cmp_lg_u32 {s(sWAVE)}, 3
        s_cbranch_scc1 L_nocs_kv
        s_mov_b32 exec_lo, 0
        s_mov_b32 exec_hi, 0xffff0000
        """)
        for cb in range(0, 10, 2):
            sg.e(f"ds_write2_b32 v7, {v(acc(2,cb)+3)}, {v(acc(2,cb+1)+3)} offset0:{16*cb} offset1:{16*cb+16}", cond=True)
        sg.e(f"""
        s_mov_b64 exec, -1
        s_waitcnt lgkmcnt(0)
        L_nocs_kv:
        s_barrier
        """)
        self.stamp(sg, "cs")
        for cb in range(0, 10, 2):
            sg.e(f"ds_read2_b32 {v(CS+cb,2)}, v7 offset0:{16*cb} offset1:{16*cb+16}", tag="cs")
        sg.e(f"""
        s_mov_b32 {s(sC0)}, {hex(f2u(LN2))}
        s_mov_b32 {s(sC0+1)}, {hex(f2u(1e-6))}
        v_mov_b32 v5, 0x3f803f80
        """)
        for rb in range(3):
            sg.e(f"v_cmp_gt_u32 vcc, 2048, {v(vTOK+rb)}")
            sg.e(f"v_cndmask_b32 {v(VAL+2*rb)}, 0, v5, vcc")
            sg.e(f"v_mov_b32 {v(VAL+2*rb+1)}, {v(VAL+2*rb)}")
        sg.wait(vm="stat")
        for k in range(12):
            sg.e(f"v_mov_b32 {v(NM+k)}, {v(SD+2*k)}")
            sg.e(f"v_mul_f32 {v(RS+k)}, {hex(f2u(LOG2E))}, {v(SD+2*k+1)}")
        sg.wait(lg="cs")
        for cb in [5, 0, 6, 1, 7, 2, 8, 3, 9, 4]:
            cs = v(CS + (cb & ~1), 2)
            sel = f"op_sel:[0,{cb&1},0] op_sel_hi:[1,{cb&1},1]"
            for j in range(6):
                sg.e(f"v_pk_fma_f32 {v(T+2*j,2)}, {v(NM+2*j,2)}, {cs}, {v(acc(0,cb)+2*j,2)} {sel} neg_lo:[1,0,0] neg_hi:[1,0,0]")
            for j in range(6):
                sg.e(f"v_pk_mul_f32 {v(T+2*j,2)}, {v(T+2*j,2)}, {v(RS+2*j,2)}")
            if cb < 5:
                for j in range(12):
                    sg.e(f"v_exp_f32 {v(E+j)}, {v(T+j)} clamp")
                for j in range(6):
                    sg.e(f"v_pk_fma_f32 {v(T+2*j,2)}, {v(T+2*j,2)}, {s(sC0,2)}, 1.0 op_sel_hi:[1,0,0]")
                for j in range(12):
                    sg.e(f"v_max_f32 {v(T+j)}, {v(T+j)}, {v(E+j)}")
                for j in range(6):
                    sg.e(f"v_pk_add_f32 {v(T+2*j,2)}, {v(T+2*j,2)}, {s(sC0,2)} op_sel:[0,1] op_sel_hi:[1,1]")
            for j in range(6):
                sg.e(f"v_cvt_pk_bf16_f32 {v(PK+6*cb+j)}, {v(T+2*j)}, {v(T+2*j+1)}")
            self.pop_b2(sg, b2, self.o.get("b2_per", 2))
        BA = SD
        self.kv_bases(sg, BA, s(sMX))
        sg.e(f"v_lshl_add_u32 {v(BA+5)}, {v(vT)}, 2, {s(sMX)}")
        D = ACC
        blks = [("kv", db, eb) for db, eb in KVBLK] + [("z", db, 0) for db in range(5)]
        for half in range(2):
            for k, (kind, db, eb) in enumerate(blks):
                d = v(D + 4 * k, 4)
                if kind == "kv":
                    A, B = PK + 6 * db, PK + 6 * (5 + eb)
                else:
                    A, B = VAL, PK + 6 * db
                if half == 0:
                    sg.e(f"v_mfma_f32_16x16x16_bf16 {d}, {v(A+4,2)}, {v(B+4,2)}, 0")
                else:
                    sg.e(f"v_mfma_f32_16x16x32_bf16 {d}, {v(A,4)}, {v(B,4)}, {d}")
        for k, (kind, db, eb) in enumerate(blks):
            if kind == "kv":
                m = mask_kv(db, eb)
                sg.e(f"s_mov_b32 exec_lo, {hex(m & 0xffffffff)}")
                sg.e(f"s_mov_b32 exec_hi, {hex(m >> 32)}")
                sg.e(f"ds_write_b128 {v(BA+eb)}, {v(D+4*k,4)} offset:{64*db}")
            else:
                if db == 0:
                    sg.e("s_mov_b64 exec, 0xffff")
                sg.e(f"ds_write_b32 {v(BA+5)}, {v(D+4*k)} offset:{6400+64*db}")
        sg.e(f"""
        s_mov_b64 exec, -1
        s_lshl_b32 s3, {s(sWAVE)}, 8
        v_lshl_add_u32 v5, v0, 2, s3
        v_add_u32 v6, {L_X}, v5
        v_or_b32 v7, {hex(HUGE)}, v5
        v_cmp_lt_u32 vcc, {143*4}, v5
        v_cndmask_b32 v7, v5, v7, vcc
        s_mul_i32 {s(sT0)}, {s(sTILE)}, 7168
        s_add_u32 {s(sT0)}, {s(sT0)}, {WS_KV}
        s_add_u32 {s(sT1)}, {s(sT0)}, 4096
        s_waitcnt lgkmcnt(0)
        s_barrier
        """)
        for q in range(7):
            sg.e(f"ds_read2st64_b32 {v(D+4*q,2)}, v6 offset0:{4*q} offset1:{4*q+72}", tag=f"r{q}")
            sg.e(f"ds_read2st64_b32 {v(D+4*q+2,2)}, v6 offset0:{4*q+144} offset1:{4*q+216}", tag=f"r{q}")
        for q in range(7):
            sg.wait(lg=f"r{q}")
            sg.e(f"v_pk_add_f32 {v(D+4*q,2)}, {v(D+4*q,2)}, {v(D+4*q+2,2)}")
            sg.e(f"v_add_f32 {v(D+4*q)}, {v(D+4*q)}, {v(D+4*q+1)}")
            so, off = (sT0, 1024 * q) if q < 4 else (sT1, 1024 * (q - 4))
            sg.e(f"buffer_atomic_add_f32 {v(D+4*q)}, {'v7' if q == 6 else 'v5'}, {s(sWS,4)}, {s(so)} offen offset:{off}", tag="pub")
        self.stamp(sg, "epi")
        self.pop_b2(sg, b2, 100)
        sg.e(f"s_lshl_b32 {s(sCTR)}, {s(sTILE)}, 9")
        sg.e(f"s_add_u32 {s(sCTR)}, {s(sCTR)}, {WS_CKV}")
        sg.e(f"s_mov_b32 {s(sNCT)}, 3")
        return sg

    def kv_bases(self, sg, BA, sbase):
        sg.e(f"v_mul_u32_u24 v5, 80, {v(vT)}")
        sg.e(f"v_lshl_add_u32 v5, {v(vG)}, 4, v5")
        sg.e(f"v_add_u32 {v(BA)}, {sbase}, v5")
        for eb in range(1, 5):
            lo = head(16 * eb)
            sg.e(f"v_add_u32 {v(BA+eb)}, {80*(16*eb-lo)}, {v(BA)}")
            if head(16 * eb + 15) != lo:
                cut = 20 * (lo + 1) - 16 * eb
                sg.e(f"v_subrev_u32 v5, 80, {v(BA+eb)}")
                sg.e(f"v_cmp_le_u32 vcc, {cut}, {v(vT)}")
                sg.e(f"v_cndmask_b32 {v(BA+eb)}, {v(BA+eb)}, v5, vcc")

    def phase2(self):
        sg = Seg()
        AC2 = 8
        RING = 88
        vA = 200
        vA8 = 204
        vXR = 208
        vOUT = 218
        vFR = 223
        vFW = 228
        vBL = 232
        vPQ = 234
        vP = 244
        vO16, vO8 = 248, 249
        BA = 250
        aB = 240

        def ac2(r, cb):
            return AC2 + (r * 5 + cb) * 4

        sg.e("L_join:")
        sg.e(f"s_mul_i32 {s(sMW)}, {s(sWAVE)}, 35840")
        bl = []
        for n in range(7, 14):
            bl.append(I(f"s_add_u32 {s(sSO)}, {s(sB2)}, {n*20480}"))
            for cb in range(5):
                vo, off = (vL16, cb * 1024) if cb < 4 else (vL16B, 0)
                bl.append(I(f"s_add_u32 m0, {s(sMW)}, {L_B2+(n-7)*5120+(4096 if cb == 4 else 0)}"))
                bl.append(I(f"buffer_load_dwordx4 {v(vo)}, {s(sWS,4)}, {s(sSO)} offen offset:{off} sc1 lds", tag=f"bl_{n}"))
        sg.e(f"""
        v_add_u32 {v(vBL)}, {s(sMW)}, {v(vL16)}
        s_mul_i32 {s(sABASE)}, {s(sI2)}, {74*4096}
        s_add_u32 {s(sABASE)}, {s(sABASE)}, {WS_A2}
        v_mul_u32_u24 v5, 336, {v(vT)}
        v_lshl_add_u32 v5, {v(vG)}, 4, v5
        v_add_u32 v5, {s(sMW)}, v5
        """)
        for r in range(4):
            sg.e(f"""
            s_add_u32 s3, {s(sWAVE)}, {r+1}
            s_and_b32 s3, s3, 3
            s_lshl_b32 {s(sT0)}, s3, 10
            s_add_u32 {s(sT0)}, {s(sT0)}, {s(sABASE)}
            v_add_u32 {v(vA+r)}, {s(sT0)}, {v(vL16)}
            v_lshl_add_u32 {v(vA8+r)}, v0, 3, {s(sT0)}
            s_mul_i32 s3, s3, {16*336}
            v_add_u32 {v(vFW+r)}, s3, v5
            """)
        sg.e(f"""
        s_lshl_b32 {s(sT0)}, {s(sWAVE)}, 6
        s_mul_i32 {s(sT1)}, {s(sI2)}, {64*1280}
        s_mul_i32 {s(sT2)}, {s(sJ2)}, 160
        s_add_u32 {s(sT1)}, {s(sT1)}, {s(sT2)}
        """)
        for q in range(5):
            sg.e(f"""
            v_add_u32 v5, {s(sT0)}, v0
            v_mul_u32_u24 v6, 3277, v5
            v_lshrrev_b32 v6, 16, v6
            v_mul_u32_u24 v7, 20, v6
            v_sub_u32 v5, v5, v7
            v_mul_u32_u24 v7, 336, v6
            v_lshl_add_u32 {v(vFR+q)}, v5, 4, v7
            v_mul_u32_u24 v7, 1280, v6
            v_lshl_add_u32 v7, v5, 3, v7
            v_add_u32 {v(vOUT+q)}, {s(sT1)}, v7
            s_add_u32 {s(sT0)}, {s(sT0)}, 256
            """)
            sg.e(f"buffer_load_dwordx2 {v(vXR+2*q,2)}, {v(vOUT+q)}, {s(sX,4)}, 0 offen", tag="xres")
        self.kv_bases(sg, BA, str(L_KV))
        sg.e(f"""
        v_lshlrev_b32 {v(BA+5)}, 4, {v(vG)}
        v_add_u32 {v(BA+5)}, {L_KV+6400}, {v(BA+5)}
        s_lshr_b32 {s(sT0)}, {s(sJ2)}, 1
        s_and_b32 {s(sT1)}, {s(sJ2)}, 1
        s_mul_i32 {s(sT0)}, {s(sT0)}, {5*4096}
        s_lshl_b32 {s(sT2)}, {s(sWAVE)}, 10
        s_add_u32 {s(sT0)}, {s(sT0)}, {s(sT2)}
        s_mul_i32 {s(sT2)}, {s(sI2)}, {20*4096}
        s_add_u32 {s(sT2)}, {s(sT2)}, {s(sT0)}
        s_add_u32 {s(sT2)}, {s(sT2)}, {WS_PQ}
        s_add_u32 {s(sT3)}, {s(sABASE)}, {s(sT0)}
        s_add_u32 {s(sT3)}, {s(sT3)}, {54*4096}
        s_lshl_b32 s3, {s(sT1)}, 13
        s_add_u32 {s(sT4)}, {s(sT2)}, s3
        s_add_u32 {s(sT5)}, {s(sT3)}, s3
        s_lshl_b32 s3, {s(sT1)}, 3
        s_add_u32 {s(sT2)}, {s(sT2)}, s3
        s_add_u32 {s(sT2)}, {s(sT2)}, {4*4096}
        s_lshl_b32 s3, {s(sT1)}, 9
        s_add_u32 {s(sT3)}, {s(sT3)}, s3
        s_add_u32 {s(sT3)}, {s(sT3)}, {4*4096}
        v_lshlrev_b32 {v(vO8)}, 3, v0
        """)
        sA, sP0, sP1, sE0, sV0, sV1 = 4, 6, 32, 34, 35, 3
        sg.e(f"""
        s_add_u32 {s(sA)}, {s(sWS)}, {s(sCTR)}
        s_addc_u32 {s(sA+1)}, {s(sWS+1)}, 0
        s_lshl_b32 s3, {s(sI2)}, 7
        s_add_u32 s3, s3, {WS_CROW}
        s_add_u32 {s(sP0)}, {s(sWS)}, s3
        s_addc_u32 {s(sP0+1)}, {s(sWS+1)}, 0
        s_lshl_b32 s3, {s(sJ2)}, 2
        s_lshr_b32 {s(sE0)}, {s(sI2)}, 3
        s_add_u32 s3, s3, {s(sE0)}
        s_lshl_b32 s3, s3, 7
        s_add_u32 s3, s3, {WS_CKV}
        s_add_u32 {s(sP1)}, {s(sWS)}, s3
        s_addc_u32 {s(sP1+1)}, {s(sWS+1)}, 0
        s_mul_i32 s3, {s(sI2)}, {64*349}
        s_lshr_b32 {s(sE0)}, s3, 16
        s_add_u32 s3, s3, {63*349}
        s_lshr_b32 s3, s3, 16
        s_cmp_eq_u32 s3, {s(sE0)}
        s_cselect_b32 {s(sE0)}, 15, 30
        s_mov_b32 {s(sSPIN)}, 0
        """)
        sg.wait(vm="pub")
        sg.e("s_barrier")
        self.stamp(sg, "acked")
        polls = f"""
        s_mov_b32 {s(sV0)}, 0
        s_mov_b32 {s(sV1)}, 0
        s_atomic_add {s(sV0)}, {s(sP0,2)}, 0x0 glc
        s_atomic_add {s(sV1)}, {s(sP1,2)}, 0x0 glc
        """
        sg.e(f"""
        s_cmp_lg_u32 {s(sWAVE)}, 0
        s_cbranch_scc1 L_noarr2
        s_mov_b32 {s(sU)}, 1
        s_atomic_add {s(sU)}, {s(sA,2)}, 0x0
        s_atomic_add {s(sU)}, {s(sA,2)}, 0x80
        s_atomic_add {s(sU)}, {s(sA,2)}, 0x100
        s_cmp_lt_u32 {s(sNCT)}, 3
        s_cbranch_scc1 L_arr3
        s_atomic_add {s(sU)}, {s(sA,2)}, 0x180
        L_arr3:
        """)
        sg.e(polls)
        sg.e("L_noarr2:")
        self.pop_b2(sg, bl, self.o.get("bl_pre", 16))
        sg.e(f"""
        s_cmp_lg_u32 {s(sWAVE)}, 0
        s_cbranch_scc1 L_s1_done
        L_s1_again:
        s_waitcnt lgkmcnt(0)
        s_cmp_eq_u32 {s(sV0)}, {s(sE0)}
        s_cselect_b32 {s(sV0)}, 11, 0x7fff
        s_cmp_eq_u32 {s(sV0)}, {s(sV1)}
        s_cbranch_scc1 L_s1_done
        s_add_u32 {s(sSPIN)}, {s(sSPIN)}, 1
        s_cmp_gt_u32 {s(sSPIN)}, {self.o['spin']}
        s_cbranch_scc1 L_s1_done
        """)
        sg.e(polls)
        sg.e("s_branch L_s1_again\nL_s1_done:\ns_barrier")
        self.stamp(sg, "s1")
        sg.e(f"""
        s_mul_i32 s3, {s(sJ2)}, 7168
        s_lshl_b32 {s(sT0)}, {s(sWAVE)}, 10
        s_add_u32 s3, s3, {s(sT0)}
        s_add_u32 s3, s3, {WS_KV}
        s_add_u32 m0, {s(sT0)}, {L_KV}
        """)
        sg.e(f"buffer_load_dwordx4 {v(vL16)}, {s(sWS,4)}, s3 offen sc1 lds", tag="kvl")
        sg.e(f"s_add_u32 m0, {s(sT0)}, {L_KV+4096}")
        sg.e(f"buffer_load_dwordx4 {v(vL16B)}, {s(sWS,4)}, s3 offen sc1 lds", tag="kvl")
        sg.e(f"buffer_load_dwordx4 {v(vPQ,4)}, {v(vL16)}, {s(sWS,4)}, {s(sT4)} offen sc1", tag="pq")
        sg.e(f"buffer_load_dwordx4 {v(vPQ+4,4)}, {v(vL16B)}, {s(sWS,4)}, {s(sT4)} offen sc1", tag="pq")
        sg.e(f"buffer_load_dwordx2 {v(vPQ+8,2)}, {v(vL16)}, {s(sWS,4)}, {s(sT2)} offen sc1", tag="pq")
        sg.e(f"s_lshl_b32 {s(sASTR)}, {s(sWAVE)}, 12")

        def a_loads(n):
            st = []
            if n == 13:
                st.append(I(f"s_cmp_ge_u32 {s(sWAVE)}, 2"))
                st.append(I(f"s_cselect_b32 {s(sU)}, {hex(HUGE)}, 0"))
            for r in range(4):
                ad = vA + r
                if n == 13:
                    st.append(I(f"v_or_b32 {v(vP+r)}, {s(sU)}, {v(vA+r)}"))
                    ad = vP + r
                st.append(I(f"buffer_load_dwordx4 {v(RING+16*(n%7)+4*r,4)}, {v(ad)}, {s(sWS,4)}, {s(sASTR)} offen sc1", tag=f"a{n}"))
            st.append(I(f"s_add_u32 {s(sASTR)}, {s(sASTR)}, 16384"))
            return st
        npre = self.o.get("a_pre", 1)
        for n in range(npre):
            sg.extend(a_loads(n))
        early = []
        for n in range(npre, 7):
            early += a_loads(n)
        sg.wait(vm="kvl")
        sg.e("s_barrier")
        self.stamp(sg, "kvl")
        RAW, OP, NUM = AC2, AC2 + 32, AC2 + 48
        DEN = NUM + 20
        blks = [("z", db, 0) for db in range(5)] + [("kv", db, eb) for db, eb in KVBLK]

        def rd(k):
            kind, db, eb = blks[k]
            sg.e(f"ds_read_b128 {v(RAW+4*(k%8),4)}, {v(BA+(5 if kind == 'z' else eb))} offset:{64*db}", tag=f"kv{k}")
        for k in range(8):
            rd(k)
        sg.wait(vm="pq")
        seen = set()
        for k, (kind, db, eb) in enumerate(blks):
            m = mask_z(db) if kind == "z" else mask_kv(db, eb)
            r, o = RAW + 4 * (k % 8), OP + 2 * (k % 8)
            sg.e(f"s_mov_b32 vcc_lo, {hex(m & 0xffffffff)}")
            sg.e(f"s_mov_b32 vcc_hi, {hex(m >> 32)}")
            sg.wait(lg=f"kv{k}")
            sg.e(f"v_cvt_pk_bf16_f32 {v(o)}, {v(r)}, {v(r+1)}")
            sg.e(f"v_cvt_pk_bf16_f32 {v(o+1)}, {v(r+2)}, {v(r+3)}")
            if m != (1 << 64) - 1:
                sg.e(f"v_cndmask_b32 {v(o)}, 0, {v(o)}, vcc")
                sg.e(f"v_cndmask_b32 {v(o+1)}, 0, {v(o+1)}, vcc")
            if k + 8 < len(blks):
                rd(k + 8)
            d = DEN if kind == "z" else NUM + 4 * eb
            sg.e(f"v_mfma_f32_16x16x16_bf16 {v(d,4)}, {v(o,2)}, {v(vPQ+2*db,2)}, {v(d,4) if d in seen else 0}")
            seen.add(d)
            self.pop_b2(sg, early, 1)
        RC = RAW
        for h in range(4):
            sg.e(f"v_add_f32 {v(RC+h)}, {hex(f2u(1e-6))}, {v(DEN+h)}")
        for h in range(4):
            sg.e(f"v_rcp_f32 {v(RC+h)}, -{v(RC+h)}")
        SC = RAW + 4
        for b in range(1, 4):
            sg.e(f"v_cmp_gt_u32 vcc, {b}, {v(vG)}")
            sg.e(f"v_cndmask_b32 {v(SC+b)}, {v(RC+b)}, {v(RC+b-1)}, vcc")
        OO = vPQ
        for b in range(5):
            sc = RC if b == 0 else (RC + 3 if b == 4 else SC + b)
            for j in range(4):
                sg.e(f"v_mul_f32 {v(NUM+4*b+j)}, {v(NUM+4*b+j)}, {v(sc)}")
            for j in range(2):
                sg.e(f"v_cvt_pk_bf16_f32 {v(OO+2*b+j)}, {v(NUM+4*b+2*j)}, {v(NUM+4*b+2*j+1)}")
        sg.e(f"buffer_store_dwordx4 {v(OO,4)}, {v(vL16)}, {s(sWS,4)}, {s(sT5)} offen sc1", tag="ost")
        sg.e(f"buffer_store_dwordx4 {v(OO+4,4)}, {v(vL16B)}, {s(sWS,4)}, {s(sT5)} offen sc1", tag="ost")
        sg.e(f"buffer_store_dwordx2 {v(OO+8,2)}, {v(vO8)}, {s(sWS,4)}, {s(sT3)} offen sc1", tag="ost")
        self.stamp(sg, "opiece")
        while early and not early[0].isvec():
            sg.append(early.pop(0))
        mf = []
        for n in range(14):
            for cb in range(5):
                for r in range(4):
                    b = a_(20 * n + 4 * cb, 4) if n < 7 else a_(aB + 4 * ((5 * (n - 7) + cb) % 4), 4)
                    c = v(ac2(r, cb), 4)
                    mf.append(I(f"v_mfma_f32_16x16x32_bf16 {c}, {b}, {v(RING+16*(n%7)+4*r,4)}, {c if n else 0}"))
        def oreg(r, m):
            f = 5 * r + m
            return RING + 4 * f
        for r in range(4):
            for m in range(5):
                for cb in range(5):
                    c = v(ac2(r, cb), 4)
                    mf.append(I(f"v_mfma_f32_16x16x32_bf16 {c}, {a_(140+20*m+4*cb,4)}, {v(oreg(r,m),4)}, {c}"))
        gp = Gaps(mf)
        sg.wait(vm=["a0", "b2_0"])

        def rd_b(F):
            n, cb = divmod(F, 5)
            return I(f"ds_read_b128 {a_(aB+4*(F%4),4)}, {v(vBL)} offset:{L_B2+n*5120+cb*1024}", tag=f"bf{F}")
        for n in range(14):
            k0 = 20 * n
            if n < 13:
                tags = [f"a{n+1}"] + ([f"b2_{n+1}"] if n + 1 < 7 else [])
                gp.put(k0 + 19, W(vm=tags))
            for cb in range(5):
                F = 5 * (n - 7) + cb
                k = k0 + 4 * cb
                if 0 <= F + 1 < 35:
                    gp.put(k + 3, W(lg=f"bf{F+1}"))
                if 0 <= F + 3 < 35:
                    if (F + 3) % 5 == 0:
                        gp.put(k, W(vm=f"bl_{7+(F+3)//5}"))
                    gp.put(k, rd_b(F + 3))
        stream = [(0, x) for x in early]
        for n in range(7, 14):
            took = 0
            while bl and (took < self.o.get("bl_per", 3)):
                x = bl.pop(0)
                stream.append((0, x))
                took += x.isvec()
            stream += [(20 * (n - 6), x) for x in a_loads(n)]
        stream += [(0, x) for x in bl]
        k = 1
        step = self.o.get("a_step", 3)
        for kmin, x in stream:
            k = max(k, kmin + 1)
            gp.put(k, x)
            if x.isvec() and x.kind != "valu":
                k += step
        self.p2_last = k
        for nn in (4, 7, 14):
            tmp = Seg()
            self.stamp(tmp, f"n{nn}")
            gp.put(20 * nn, *tmp)
        na = self.o.get("o_arrive", 4)
        gp.put(20 * na + 2, W(vm="ost"),
               I(f"s_lshr_b32 s3, {s(sJ2)}, 1"), I(f"s_lshl_b32 {s(sT0)}, {s(sI2)}, 2"), I(f"s_add_u32 s3, s3, {s(sT0)}"),
               I(f"s_lshl_b32 s3, s3, 7"), I(f"s_add_u32 s3, s3, {WS_CO}"),
               I("v_mov_b32 v5, 1"), I("v_mov_b32 v6, 0"), I("s_mov_b64 exec, 1"),
               I(f"buffer_atomic_add v5, v6, {s(sWS,4)}, s3 offen sc1"), I("s_mov_b64 exec, -1"))
        gp.put(20 * na + 6, I(f"s_add_u32 {s(sT0)}, {s(sT0)}, {s(sWAVE)}"), I(f"s_lshl_b32 {s(sT0)}, {s(sT0)}, 7"),
               I(f"s_add_u32 {s(sT0)}, {s(sT0)}, {WS_CO}"))
        npoll, nlook = self.o.get("o_poll", 8), self.o.get("o_look", 10)
        poll2 = f"buffer_atomic_add v7, v6, {s(sWS,4)}, {s(sT0)} offen sc0 sc1"
        gp.put(20 * npoll + 2, I("v_mov_b32 v7, 0"), I("s_mov_b64 exec, 1"), I(poll2, tag="p2"), I("s_mov_b64 exec, -1"))
        tmp = Seg()
        self.stamp(tmp, "look0")
        tmp.wait(vm="p2")
        tmp.e("s_mov_b64 exec, 1")
        tmp.e("v_cmp_ne_u32 vcc, 8, v7")
        self.spin(tmp, "L_s2", "v_mov_b32 v7, 0\n" + poll2, "v_cmp_ne_u32 vcc, 8, v7")
        tmp.e("s_mov_b64 exec, -1")
        self.stamp(tmp, "look1")
        tmp.e(f"s_mul_i32 {s(sASTR)}, {s(sWAVE)}, {5*4096}")
        tmp.e(f"s_add_u32 {s(sASTR)}, {s(sASTR)}, {54*4096}")
        gp.put(20 * nlook + 2, *tmp)
        for m in range(1, 5):
            gp.put(20 * nlook + 3, I(f"s_add_u32 {s(sT0+m)}, {s(sASTR)}, {m*4096}"))
        k = 20 * nlook + 5
        for r in range(4):
            for m in range(5):
                f = 5 * r + m
                free_after = 20 * (7 + f // 4 + 1)
                k = max(k, free_after + 1)
                so = s(sASTR) if m == 0 else s(sT0 + m)
                if m < 4:
                    gp.put(k, I(f"buffer_load_dwordx4 {v(oreg(r,m),4)}, {v(vA+r)}, {s(sWS,4)}, {so} offen sc1", tag=f"o{r}"))
                else:
                    gp.put(k, I(f"buffer_load_dwordx2 {v(oreg(r,m),2)}, {v(vA8+r)}, {s(sWS,4)}, {so} offen sc1", tag=f"o{r}"))
                    gp.put(k + 1, I(f"buffer_load_dwordx2 {v(oreg(r,m)+2,2)}, {v(vA8+r)}, {s(sWS,4)}, {so} offen offset:512 sc1", tag=f"o{r}"))
                k += 3
        for r in range(4):
            gp.put(280 + 25 * r - 1, W(vm=[f"o{r}"] + [f"b2_{q}" for q in range(7, 12)]))
            if r < 3:
                for cb in range(5):
                    gp.put(280 + 25 * (r + 1) + 4 + 4 * cb, I(f"ds_write_b128 {v(vFW+r)}, {v(ac2(r,cb),4)} offset:{64*cb}"))
        sg.extend(gp.flat())
        self.stamp(sg, "k2end")
        for cb in range(5):
            sg.e(f"ds_write_b128 {v(vFW+3)}, {v(ac2(3,cb),4)} offset:{64*cb}")
        F2 = vA
        for q in range(5):
            sg.e(f"v_add_u32 {v(F2+q)}, 71680, {v(vFR+q)}")
        sg.e(f"s_mov_b32 {s(sC0)}, {hex(f2u(-LN2))}")
        sg.e("s_waitcnt lgkmcnt(0)\ns_barrier")
        PS = RING
        order = []
        for q in range(5):
            for ww in range(4):
                base = (vFR if ww < 2 else F2) + q
                order.append(I(f"ds_read_b128 {v(PS+16*q+4*ww,4)}, {v(base)} offset:{35840*(ww&1)}", tag=f"f{q}"))
        sg.extend(order[:12])
        sg.wait(vm="xres")
        XU = AC2
        for q in range(5):
            sg.e(f"v_lshlrev_b32 {v(XU+4*q)}, 16, {v(vXR+2*q)}")
            sg.e(f"v_and_b32 {v(XU+4*q+1)}, 0xffff0000, {v(vXR+2*q)}")
            sg.e(f"v_lshlrev_b32 {v(XU+4*q+2)}, 16, {v(vXR+2*q+1)}")
            sg.e(f"v_and_b32 {v(XU+4*q+3)}, 0xffff0000, {v(vXR+2*q+1)}")
        for q in range(5):
            sg.wait(lg=f"f{q}")
            if q < 2:
                sg.extend(order[12 + 4 * q:16 + 4 * q])
            p = PS + 16 * q
            for j in range(2):
                sg.e(f"v_pk_add_f32 {v(p+2*j,2)}, {v(p+2*j,2)}, {v(p+4+2*j,2)}")
                sg.e(f"v_pk_add_f32 {v(p+8+2*j,2)}, {v(p+8+2*j,2)}, {v(p+12+2*j,2)}")
            for j in range(2):
                sg.e(f"v_pk_add_f32 {v(p+2*j,2)}, {v(p+2*j,2)}, {v(p+8+2*j,2)}")
            for j in range(2):
                sg.e(f"v_pk_fma_f32 {v(p+2*j,2)}, {v(p+2*j,2)}, {s(sC0,2)}, {v(XU+4*q+2*j,2)} op_sel_hi:[1,0,1]")
            for j in range(2):
                sg.e(f"v_cvt_pk_bf16_f32 {v(p+4+j)}, {v(p+2*j)}, {v(p+2*j+1)}")
            sg.e(f"buffer_store_dwordx2 {v(p+4,2)}, {v(vOUT+q)}, {s(sOUT,4)}, 0 offen")
        if self.o["prof"]:
            sg.e("s_waitcnt vmcnt(0)")
            self.stamp(sg, "end")
            self.stamp(sg, "rt1")
            sg.e("s_waitcnt lgkmcnt(0)")
            sg.e(f"s_lshl_b32 s3, {s(sUU)}, 6")
            sg.e(f"s_add_u32 s3, s3, {WS_PROF}")
            for k in range(len(self.stamps)):
                sg.e(f"v_writelane_b32 v5, {s(sPROF+2*k)}, {k}")
            sg.e(f"v_writelane_b32 v5, {s(sROLE)}, 15")
            sg.e("v_lshlrev_b32 v6, 2, v0\ns_mov_b64 exec, 0xffff")
            sg.e(f"buffer_store_dword v5, v6, {s(sWS,4)}, s3 offen")
            if self.o.get("diag") is not None:
                k = self.o["diag"]
                i0, irt = self.stamps.index("start"), self.stamps.index("rt0")
                sg.e(f"s_sub_u32 s3, {s(sPROF+2*k)}, {s(sPROF+2*i0)}")
                sg.e(f"s_lshr_b32 s3, s3, 2")
                sg.e(f"s_add_u32 s3, s3, 10000")
                if self.o.get("diagwg") is not None:
                    sg.e(f"s_cmp_lg_u32 s2, {self.o['diagwg']}\ns_cbranch_scc1 L_exit")
                sg.e(f"""
                L_diag:
                s_memrealtime s[4:5]
                s_waitcnt lgkmcnt(0)
                s_sub_u32 s4, s4, {s(sPROF+2*irt)}
                s_cmp_lt_u32 s4, s3
                s_cbranch_scc1 L_diag
                """)
        sg.e("L_exit:\ns_endpgm")
        return sg

    def build(self):
        pro = self.prologue()
        pro.extend(self.side_setup_loads())
        pro.extend(self.decode())
        early = [x for x in self.dma_sched() if x[0] < 2]

        def issue(x):
            pro.append(x[1]); pro.extend(x[2]); pro.extend(x[3])
        pro.extend(self.lds_read_setup())
        for x in early[:11]:
            issue(x)
        early = early[11:]
        self.stamp(pro, "s0iss")
        side = [] if self.o.get("side_in_loop", 1) else [x for x in self.side_work() if not isinstance(x, tuple)]
        every = max(1, (len(side) - 8) // max(1, len(early)))
        for k, x in enumerate(side):
            if isinstance(x, list):
                pro.extend(x)
            else:
                pro.append(x)
                if x.kind == "wait" and x.wvm == ["rp"]:
                    self.stamp(pro, "uniq")
            if k >= 8 and (k - 8) % every == 0 and early:
                issue(early.pop(0))
        for x in early:
            issue(x)
        pro.e(f"s_cmp_eq_u32 {s(sROLE)}, 0\ns_cbranch_scc1 L_kv")
        khq = self.kloop(False)
        khq.e(f"s_cmp_eq_u32 {s(sROLE)}, 1\ns_cbranch_scc1 L_q")
        eh = self.epi_hq(False)
        eq = Seg().e("L_q:")
        eq.extend(self.epi_hq(True))
        eq.e("s_branch L_join")
        kkv = Seg().e("L_kv:")
        kkv.extend(self.kloop(True))
        kkv.extend(self.epi_kv())
        kkv.e("s_branch L_join")
        p2 = self.phase2()
        finalize([[pro, khq, eh, p2], [pro, khq, eq, p2], [pro, kkv, p2]])
        body = "".join(render(x) for x in (pro, khq, eh, p2, eq, kkv))
        head = open("cdna_kernels/" + NAME[:-7] + ".s.ref").read().split("; Override launch")[0]
        out = head
        out += f"; @launch grid=(256,1,1) block=(256,1,1) lds={LDS_BYTES}\n"
        out += f"""; Generated by my own script (gen/gen.py): one persistent workgroup per CU.
.amdgcn_target "amdgcn-amd-amdhsa--gfx950"
.text
.globl {NAME}
.p2align 8
.type {NAME},@function
{NAME}:
"""
        out += body
        out += f"""L_code_end:
    s_endpgm
.fill 1056, 4, 0xbf810000
.section .rodata,"a"
.p2align 6
.amdhsa_kernel {NAME}
  .amdhsa_next_free_vgpr 512
  .amdhsa_next_free_sgpr 102
  .amdhsa_accum_offset 256
  .amdhsa_group_segment_fixed_size 0
  .amdhsa_kernarg_size 72
  .amdhsa_user_sgpr_count 2
  .amdhsa_user_sgpr_kernarg_segment_ptr 1
  .amdhsa_system_sgpr_workgroup_id_x 1
.end_amdhsa_kernel
"""
        return out


def assemble_size(text):
    import subprocess, tempfile, os
    d = tempfile.mkdtemp()
    p = os.path.join(d, "k.s")
    open(p, "w").write(text)
    r = subprocess.run(["clang", "-x", "assembler", "-target", "amdgcn-amd-amdhsa", "-mcpu=gfx950", "-c", p, "-o", p + ".o"], capture_output=True, text=True)
    if r.returncode:
        print(r.stderr[:4000])
        raise SystemExit(1)
    r = subprocess.run(["llvm-objdump", "-t", p + ".o"], capture_output=True, text=True)
    sym = {l.split()[-1]: int(l.split()[0], 16) for l in r.stdout.splitlines() if ".text" in l and l.split()[-1].startswith("L_")}
    return sym


def generate(**o):
    g = Gen(**o)
    text = g.build()
    sym = assemble_size(text.replace("CODE_LINES*128", "1280").replace("CODE_MASK", "7"))
    size = sym["L_code_end"] - sym["L_pc"]
    lines = (size + 16383) // 16384
    pad = (lines * 16384 - size) // 4 + 32
    text = text.replace("CODE_LINES*128", str(lines * 128)).replace("CODE_MASK", str((1 << lines) - 1)).replace(".fill 1056,", f".fill {pad},")
    sym["side_last"] = getattr(g, "side_last", -1); sym["p2_last"] = g.p2_last
    return text, g.stamps, sym


if __name__ == "__main__":
    opts = {}
    out = "cdna_kernels/" + NAME[:-7] + ".s"
    for a in sys.argv[1:]:
        k, val = a.split("=")
        if k == "out":
            out = val
        else:
            opts[k] = int(val)
    text, stamps, sym = generate(**opts)
    open(out, "w").write(text)
    print("wrote", out, "code bytes", sym["L_code_end"], "stamps", stamps)
    print({k: x for k, x in sorted(sym.items(), key=lambda kv: kv[1])})
```
